```python
import torch

def _softmax(x, axis=-1):
    return torch.softmax(x, dim=axis)

def _gelu(x):
    return torch.nn.functional.gelu(x, approximate='tanh')

def _silu(x):
    return torch.nn.functional.silu(x)

def _sigmoid(x):
    return torch.sigmoid(x)

def _layernorm(x, axis=-1, eps=1e-05):
    m = x.mean(dim=axis, keepdim=True)
    v = x.var(dim=axis, keepdim=True, unbiased=False)
    return (x - m) / torch.sqrt(v + eps)

def _scatter_add(tgt, idx, src, axis=0):
    return tgt.clone().index_add_(axis, idx, src)

def _segment_sum(src, seg, n):
    out = torch.zeros((n,) + src.shape[1:], dtype=src.dtype)
    return out.index_add_(0, seg, src)

def _pad(x, pw):
    flat = tuple((v for pair in reversed(pw) for v in pair))
    return torch.nn.functional.pad(x, flat)
kernel_name = 'parallel_sum__memory_aug_recurrent_mem_tr__dense_activation_gelu__prompt'

def setup_inputs():

    _w = lambda a: (lambda t: t.to(torch.bfloat16) if t.is_floating_point() else t)(torch.as_tensor(a))

    def _A_setup():
        B, S, Dm = (1, 2048, 448)
        H, Dh = (16, 256)
        M, seg = (8, 32)
        seg = min(seg, S)
        S = S // seg * seg
        return {'x': _w((lambda *s: torch.randn(*s, dtype=torch.bfloat16) * 0.05)(B, S, Dm)), 'mem0': _w((lambda *s: torch.randn(*s, dtype=torch.bfloat16) * 0.2)(B, M, Dm)), 'Wq': _w((lambda *s: torch.randn(*s, dtype=torch.bfloat16) * 1.6)(Dm, H, Dh) * Dm ** (-0.5)), 'Wk': _w((lambda *s: torch.randn(*s, dtype=torch.bfloat16) * 1.6)(Dm, H, Dh) * Dm ** (-0.5)), 'Wv': _w((lambda *s: torch.randn(*s, dtype=torch.bfloat16) * 0.2)(Dm, H, Dh) * Dm ** (-0.5)), 'Wo': _w((lambda *s: torch.randn(*s, dtype=torch.bfloat16) * 0.2)(H, Dh, Dm) * (H * Dh) ** (-0.5)), 'seg_len': seg}
    _A_in = _A_setup()

    def _B_setup():
        B, S, D, F = (1, 2048, 448, 1792)
        return {'x': _w((lambda *s: torch.randn(*s, dtype=torch.bfloat16) * 0.05)(B, S, D)), 'w1': _w((lambda *s: torch.randn(*s, dtype=torch.bfloat16) * 0.4)(D, F) * D ** (-0.5)), 'b1': _w((lambda *s: torch.randn(*s, dtype=torch.bfloat16) * 12.8)(F) * 0.01), 'w2': _w((lambda *s: torch.randn(*s, dtype=torch.bfloat16) * 0.1)(F, D) * F ** (-0.5)), 'b2': _w((lambda *s: torch.randn(*s, dtype=torch.bfloat16) * 1.6)(D) * 0.01)}
    _B_in = _B_setup()
    return {'A_x': _A_in['x'], 'A_mem0': _A_in['mem0'], 'A_Wq': _A_in['Wq'], 'A_Wk': _A_in['Wk'], 'A_Wv': _A_in['Wv'], 'A_Wo': _A_in['Wo'], 'A_seg_len': _A_in['seg_len'], 'B_x': _B_in['x'], 'B_w1': _B_in['w1'], 'B_b1': _B_in['b1'], 'B_w2': _B_in['w2'], 'B_b2': _B_in['b2']}

def reference(A_x, A_mem0, A_Wq, A_Wk, A_Wv, A_Wo, A_seg_len, B_x, B_w1, B_b1, B_w2, B_b2):

    def _A_ref(x, mem0, Wq, Wk, Wv, Wo, seg_len):
        B, S, Dm = x.shape
        H, Dh = (Wq.shape[1], Wq.shape[2])
        M = mem0.shape[1]
        scale = Dh ** (-0.5)
        n_seg = S // seg_len
        L = M + seg_len
        idx = torch.arange(L)
        mask = (idx[:, None] < M) | (idx[:, None] >= idx[None, :])
        mem = mem0
        outs = []
        for s in range(n_seg):
            xs = x[:, s * seg_len:(s + 1) * seg_len, :].clone()
            h = torch.concatenate([mem, xs], axis=1)
            q = torch.einsum('btd,dhe->bhte', h, Wq)
            k = torch.einsum('btd,dhe->bhte', h, Wk)
            v = torch.einsum('btd,dhe->bhte', h, Wv)
            scores = torch.einsum('bhqe,bhke->bhqk', q, k) * scale
            scores = torch.where(mask[None, None], scores, -1000000000.0)
            p = _softmax(scores, axis=-1)
            o = torch.einsum('bhqk,bhke->bhqe', p, v)
            o = torch.einsum('bhte,hed->btd', o, Wo)
            mem = o[:, :M, :].clone()
            outs.append(o[:, M:, :])
        return torch.concatenate(outs, axis=1)

    def _B_ref(x, w1, b1, w2, b2):
        h = torch.einsum('bsd,df->bsf', x, w1) + b1
        h = _gelu(h)
        return torch.einsum('bsf,fd->bsd', h, w2) + b2
    x = A_x
    xn = _layernorm(x, axis=-1)
    return x + _A_ref(xn, A_mem0, A_Wq, A_Wk, A_Wv, A_Wo, A_seg_len) + _B_ref(xn, B_w1, B_b1, B_w2, B_b2)
```

```python
from lib import *
HS = 912
def bop(a, op, regs, va, srd, sb, off, fl=''):
    if off >= 4096:
        a.e('s_add_u32 s39, %s, %d' % ('s%d' % sb if sb is not None else '0', off & ~4095)); sb = 39; off &= 4095
    a.e('%s %s, v%d, s[%d:%d], %s offen offset:%d %s' % (op, regs, va, srd, srd+3, 's%d' % sb if sb is not None else '0', off, fl))
def poll(a, nload, vaddr0, step_bytes, dst, srd, soff, width, tagpos):
    L = a.uniq('poll')
    a.e('s_mov_b32 s40, 0')
    a.lab(L)
    for i in range(nload):
        bop(a, 'buffer_load_dwordx%d' % width, 'v[%d:%d]' % (dst+width*i, dst+width*i+width-1), vaddr0, srd, soff, i*step_bytes, 'sc1')
    a.e('s_waitcnt vmcnt(0)')
    first = True
    for i in range(nload):
        for t in tagpos:
            r = dst + width*i + t
            if first: a.e('v_mov_b32 v119, v%d' % r); first = False
            else: a.e('v_and_b32 v119, v119, v%d' % r)
    a.e('v_cmp_ne_u32 vcc, 1, v119')
    a.e('s_add_u32 s40, s40, 1')
    a.e('s_cmp_gt_u32 s40, 0x100000')
    a.e('s_cbranch_scc1 %s_x' % L)
    a.e('s_cbranch_vccnz %s' % L)
    a.lab(L + '_x')

def wfrag(idx, na):
    if idx < na: return 'a[%d:%d]' % (4*idx, 4*idx+3)
    r = 120 + 4*(idx - na); return 'v[%d:%d]' % (r, r+3)

def get_mem(a, ldsoff):
    L = a.uniq('gm')
    a.e('s_cmp_lg_u32 s41, 0'); a.e('s_cbranch_scc1 %s_p' % L)
    for i in range(7):
        bop(a, 'buffer_load_dword', 'v%d' % (60+2*i), 51, 24, None, i*1024)
    a.e('s_waitcnt vmcnt(0)')
    a.e('s_branch %s_w' % L)
    a.lab(L + '_p')
    a.e('s_lshl_b32 s42, s41, 14')
    poll(a, 7, 50, 2048, 60, 12, 42, 2, [1])
    a.lab(L + '_w')
    for i in range(7): a.e('ds_write_b32 v%d, v%d offset:%d' % (52+i, 60+2*i, ldsoff))

def chain(a, name):
    a.begin(name)
    a.e('s_cmp_ge_u32 s2, 44'); a.e('s_cbranch_scc1 %s_done' % name)
    a.srd(12, D_WS, MBMEM, MBP - MBMEM); a.srd(16, D_WS, MBP, MB_END - MBP); a.srd(24, A_MEM0)
    a.e('v_lshlrev_b32 v50, 3, v0'); a.e('v_lshlrev_b32 v51, 2, v0')
    a.e('v_and_b32 v1, 63, v0'); a.e('v_lshrrev_b32 v2, 6, v0'); a.e('v_and_b32 v3, 15, v0'); a.e('v_bfe_u32 v4, v0, 4, 2')
    a.e('s_nop 0'); a.e('v_readfirstlane_b32 s43, v2')
    a.e('v_lshlrev_b32 v5, 4, v0')
    for i in range(4): a.e('v_mov_b32 v%d, 0' % (8+i))
    for i in range(16): a.e('ds_write_b128 v5, v[8:11] offset:%d' % (i*4096))
    a.e('v_add_u32 v5, 0x10000, v5')
    for i in range(9): a.e('ds_write_b128 v5, v[8:11] offset:%d' % (i*4096))
    a.e('s_waitcnt lgkmcnt(0)'); a.e('s_barrier')
    for i in range(7):
        a.e('v_add_u32 v6, %d, v0' % (256*i)); a.e('s_mov_b32 s44, 0x%x' % ((2**32 + 223)//224)); a.e('v_mul_hi_u32 v7, v6, s44')
        a.e('v_mul_u32_u24 v8, 224, v7'); a.e('v_sub_u32 v8, v6, v8'); a.e('v_mul_u32_u24 v7, %d, v7' % HS); a.e('v_lshl_add_u32 v%d, v8, 2, v7' % (52+i))
    a.e('s_cmp_ge_u32 s2, 16'); a.e('s_cbranch_scc1 %s_val' % name)
    HB = [0, 48*HS]; RED = 2*48*HS
    a.srd(8, D_WS, AT, 16*448*896); a.srd(20, D_WS, XN, 2048*896)
    a.e('s_mul_i32 s44, s2, %d' % (448*896)); a.e('s_mul_i32 s45, s43, %d' % (112*896)); a.e('s_add_u32 s44, s44, s45')
    a.e('v_mul_u32_u24 v6, 896, v3'); a.e('v_lshl_add_u32 v6, v4, 4, v6'); a.e('v_add_u32 v6, s44, v6')
    for t in range(7):
        for ks in range(14):
            a.e('buffer_load_dwordx4 %s, v6, s[8:11], 0 offen offset:%d' % (wfrag(t*14+ks, 64), ks*64))
        a.e('v_add_u32 v6, %d, v6' % (16*896))
    for i in range(7): a.e('v_add_u32 v%d, %d, v%d' % (52+i, 32*HS, 52+i))
    XA = [36, 37, 38, 39, 47, 48, 59]
    for i in range(7):
        a.e('v_add_u32 v6, %d, v0' % (256*i)); a.e('s_mov_b32 s44, 0x%x' % ((2**32 + 55)//56)); a.e('v_mul_hi_u32 v7, v6, s44')
        a.e('v_mul_u32_u24 v8, 56, v7'); a.e('v_sub_u32 v8, v6, v8'); a.e('v_mul_u32_u24 v7, %d, v7' % HS); a.e('v_lshl_add_u32 v%d, v8, 4, v7' % XA[i])
    a.e('v_lshlrev_b32 v49, 4, v0')
    def xs_load():
        for i in range(7): bop(a, 'buffer_load_dwordx4', 'v[%d:%d]' % (88+4*i, 91+4*i), 49, 20, 46, i*4096)
    def xs_store(buf):
        for i in range(7): a.e('ds_write_b128 v%d, v[%d:%d] offset:%d' % (XA[i], 88+4*i, 91+4*i, HB[buf]))
    a.e('s_mov_b32 s46, 0'); xs_load(); a.e('s_waitcnt vmcnt(0)'); xs_store(0)
    a.e('s_mov_b32 s46, %d' % (32*896)); xs_load()
    a.e('v_add_u32 v40, 32, v3'); a.e('v_mul_u32_u24 v40, %d, v40' % HS); a.e('v_lshl_add_u32 v40, v4, 4, v40')
    a.e('v_mul_u32_u24 v41, %d, v3' % HS); a.e('v_lshl_add_u32 v41, v4, 3, v41'); a.e('v_mul_u32_u24 v6, 224, v2'); a.e('v_add_u32 v41, v41, v6')
    a.e('v_mul_u32_u24 v42, 3072, v2'); a.e('v_lshl_add_u32 v42, v4, 8, v42'); a.e('v_lshl_add_u32 v42, v3, 2, v42'); a.e('v_add_u32 v42, %d, v42' % RED)
    a.e('v_and_b32 v43, 7, v1'); a.e('v_bfe_u32 v44, v1, 3, 2'); a.e('v_mul_u32_u24 v45, 640, v44'); a.e('v_lshl_add_u32 v45, v43, 2, v45'); a.e('v_add_u32 v45, %d, v45' % RED)
    a.e('v_mul_u32_u24 v46, 20, v43'); a.e('v_mul_u32_u24 v6, 5, v44'); a.e('v_add_u32 v46, v46, v6'); a.e('s_mul_i32 s44, s2, 160'); a.e('v_add_u32 v46, s44, v46'); a.e('v_lshlrev_b32 v46, 3, v46')
    a.e('s_mov_b32 s41, 0')
    a.lab(name + '_sloop')
    for par in range(2):
        hb = HB[par]
        get_mem(a, hb)
        a.e('s_waitcnt lgkmcnt(0)'); a.e('s_barrier')
        for r in range(28): a.e('v_mov_b32 v%d, 0' % (8+r))
        for half in range(2):
            for k in range(7): a.e('ds_read_b128 v[%d:%d], v40 offset:%d' % (60+4*k, 63+4*k, hb + (half*7+k)*64))
            for k in range(7):
                a.e('s_waitcnt lgkmcnt(%d)' % (6-k))
                for t in range(7):
                    a.e('v_mfma_f32_16x16x32_bf16 v[%d:%d], %s, v[%d:%d], v[%d:%d]' % (8+4*t, 11+4*t, wfrag(t*14+half*7+k, 64), 60+4*k, 63+4*k, 8+4*t, 11+4*t))
        a.e('s_nop 7')
        for t in range(7):
            a.e('v_cvt_pk_bf16_f32 v%d, v%d, v%d' % (8+4*t, 8+4*t, 9+4*t)); a.e('v_cvt_pk_bf16_f32 v%d, v%d, v%d' % (9+4*t, 10+4*t, 11+4*t))
        for q in range(4):
            if q < 3:
                a.e('v_mov_b32 v%d, v%d' % (10+8*q, 12+8*q)); a.e('v_mov_b32 v%d, v%d' % (11+8*q, 13+8*q))
            else:
                a.e('v_mov_b32 v%d, 0' % (10+8*q)); a.e('v_mov_b32 v%d, 0' % (11+8*q))
        for r in range(12): a.e('v_mov_b32 v%d, 0' % (76+r))
        a.e('v_add_u32 v41, %d, v41' % hb)
        for kt in range(3):
            for q in range(4):
                r = 60 + 4*q
                a.e('ds_read_b64 v[%d:%d], v41 offset:%d' % (r, r+1, kt*16*HS + q*64))
                a.e('ds_read_b64 v[%d:%d], v41 offset:%d' % (r+2, r+3, kt*16*HS + q*64 + 32))
            a.e('s_waitcnt lgkmcnt(0)')
            for q in range(4):
                r = 60 + 4*q
                a.e('v_mfma_f32_16x16x32_bf16 v[%d:%d], v[%d:%d], v[%d:%d], v[%d:%d]' % (76+4*kt, 79+4*kt, r, r+3, 8+8*q, 11+8*q, 76+4*kt, 79+4*kt))
        a.e('v_subrev_u32 v41, %d, v41' % hb); a.e('s_nop 7'); a.e('s_nop 3')
        for kt in range(3):
            for r in range(4): a.e('ds_write_b32 v42, v%d offset:%d' % (76+4*kt+r, kt*1024 + r*64))
        a.e('s_waitcnt lgkmcnt(0)'); a.e('s_barrier')
        sk = a.uniq('sk')
        a.e('s_cmp_lg_u32 s43, 0'); a.e('s_cbranch_scc1 %s' % sk)
        dst = [8, 18, 60, 70]
        for w in range(4):
            for k in range(10): a.e('ds_read_b32 v%d, v45 offset:%d' % (dst[w]+k, w*3072 + k*64))
        a.e('s_waitcnt lgkmcnt(0)')
        for k in range(10):
            a.e('v_add_f32 v%d, v%d, v%d' % (8+k, 8+k, 18+k)); a.e('v_add_f32 v%d, v%d, v%d' % (60+k, 60+k, 70+k)); a.e('v_add_f32 v%d, v%d, v%d' % (8+k, 8+k, 60+k))
        a.e('v_max_f32 v20, v8, v9')
        for k in range(2, 10): a.e('v_max_f32 v20, v20, v%d' % (8+k))
        def red(op):
            for m in (8, 16):
                a.e('v_xor_b32 v21, %d, v1' % m); a.e('v_lshlrev_b32 v21, 2, v21'); a.e('ds_bpermute_b32 v22, v21, v20'); a.e('s_waitcnt lgkmcnt(0)'); a.e('%s v20, v20, v22' % op)
        red('v_max_f32')
        for k in range(10):
            a.e('v_sub_f32 v%d, v%d, v20' % (8+k, 8+k)); a.e('v_mul_f32 v%d, 0x3fb8aa3b, v%d' % (8+k, 8+k)); a.e('v_exp_f32 v%d, v%d' % (8+k, 8+k))
        a.e('s_nop 0'); a.e('v_add_f32 v20, v8, v9')
        for k in range(2, 10): a.e('v_add_f32 v20, v20, v%d' % (8+k))
        red('v_add_f32')
        a.e('v_rcp_f32 v20, v20'); a.e('s_nop 0')
        for k in range(10): a.e('v_mul_f32 v%d, v%d, v20' % (8+k, 8+k))
        for k in range(5):
            a.e('v_cvt_pk_bf16_f32 v%d, v%d, v%d' % (24+2*k, 8+2*k, 9+2*k)); a.e('v_mov_b32 v%d, 1' % (25+2*k))
        a.e('s_lshl_b32 s42, s41, 15')
        a.e('s_mov_b32 exec_lo, -1'); a.e('s_mov_b32 exec_hi, 0')
        for k in range(5): a.e('buffer_store_dwordx2 v[%d:%d], v46, s[16:19], s42 offen offset:%d sc1' % (24+2*k, 25+2*k, k*8))
        a.e('s_mov_b64 exec, -1')
        a.lab(sk)
        a.e('s_waitcnt vmcnt(0)')
        xs_store(par ^ 1)
        a.e('s_add_u32 s46, s46, %d' % (32*896)); xs_load()
        a.e('s_add_u32 s41, s41, 1')
    a.e('s_cmp_lt_u32 s41, 64'); a.e('s_cbranch_scc1 %s_sloop' % name)
    a.e('s_branch %s_done' % name)
    a.lab(name + '_val')
    MB = 0; RS = 1296; RT = 16*HS; PT = RT + 16*RS
    a.srd(8, D_WS, WVT, 16*448*896); a.srd(20, D_WS, VOT, 7168*4096); a.srd(28, D_WS, YB, 64*16*448*16)
    a.e('s_sub_u32 s47, s2, 16')
    a.e('s_mul_i32 s44, s43, %d' % (4*448*896)); a.e('s_mul_i32 s45, s47, %d' % (16*896)); a.e('s_add_u32 s44, s44, s45')
    a.e('v_mul_u32_u24 v6, 896, v3'); a.e('v_lshl_add_u32 v6, v4, 4, v6'); a.e('v_add_u32 v6, s44, v6')
    for hh in range(4):
        for ks in range(14):
            a.e('buffer_load_dwordx4 %s, v6, s[8:11], 0 offen offset:%d' % (wfrag(hh*14+ks, 64), ks*64))
        a.e('v_add_u32 v6, %d, v6' % (448*896))
    for i in range(4):
        a.e('v_add_u32 v6, %d, v0' % (256*i)); a.e('v_lshrrev_b32 v7, 6, v6'); a.e('v_bfe_u32 v8, v6, 2, 4'); a.e('v_and_b32 v9, 3, v6')
        a.e('v_mul_u32_u24 v10, 448, v7'); a.e('v_add_u32 v10, v10, v8'); a.e('s_lshl_b32 s44, s47, 4'); a.e('v_add_u32 v10, s44, v10')
        a.e('v_lshlrev_b32 v10, 12, v10'); a.e('v_lshl_add_u32 v%d, v9, 4, v10' % (36+i))
        a.e('v_mul_u32_u24 v10, %d, v8' % RS); a.e('v_mul_u32_u24 v11, 80, v7'); a.e('v_add_u32 v10, v10, v11'); a.e('v_lshl_add_u32 v10, v9, 4, v10'); a.e('v_add_u32 v%d, %d, v10' % (40+i, RT))
    def vo_load():
        for i in range(4): a.e('buffer_load_dwordx4 v[%d:%d], v%d, s[20:23], s46 offen' % (88+4*i, 91+4*i, 36+i))
    a.e('s_mov_b32 s46, 0'); vo_load()
    for i in range(5):
        a.e('v_add_u32 v6, %d, v0' % (256*i)); a.e('v_lshlrev_b32 v6, 1, v6')
        a.e('s_mov_b32 s44, 0x%x' % ((2**32 + 19)//20)); a.e('v_mul_hi_u32 v7, v6, s44'); a.e('v_mul_u32_u24 v8, 20, v7'); a.e('v_sub_u32 v8, v6, v8')
        a.e('v_and_b32 v9, 7, v7'); a.e('v_lshrrev_b32 v7, 3, v7')
        a.e('v_mul_u32_u24 v9, %d, v9' % RS); a.e('v_mul_u32_u24 v7, 80, v7'); a.e('v_add_u32 v9, v9, v7'); a.e('v_lshl_add_u32 v9, v8, 2, v9'); a.e('v_add_u32 v%d, %d, v9' % (44+i, PT))
    a.e('v_lshlrev_b32 v49, 4, v0')
    a.e('v_mul_u32_u24 v30, %d, v3' % HS); a.e('v_lshl_add_u32 v30, v4, 4, v30')
    a.e('v_mul_u32_u24 v31, %d, v3' % RS); a.e('v_lshl_add_u32 v31, v4, 4, v31')
    a.e('v_mul_u32_u24 v32, %d, v3' % RS); a.e('v_lshl_add_u32 v32, v4, 3, v32'); a.e('v_mul_u32_u24 v6, 320, v2'); a.e('v_add_u32 v32, v32, v6'); a.e('v_add_u32 v32, %d, v32' % (RT + 64))
    a.e('v_mul_u32_u24 v33, %d, v2' % (4*448)); a.e('v_add_u32 v33, v33, v3'); a.e('s_lshl_b32 s44, s47, 4'); a.e('v_add_u32 v33, s44, v33'); a.e('v_lshlrev_b32 v33, 4, v33'); a.e('v_lshl_add_u32 v33, v4, 3, v33')
    a.e('v_mul_u32_u24 v34, 224, v3'); a.e('v_lshl_add_u32 v34, v4, 1, v34'); a.e('s_lshl_b32 s44, s47, 3'); a.e('v_add_u32 v34, s44, v34'); a.e('v_lshlrev_b32 v34, 3, v34')
    a.e('s_mov_b32 s41, 0')
    a.lab(name + '_vloop')
    a.e('s_waitcnt vmcnt(0)')
    for i in range(4): a.e('ds_write_b128 v%d, v[%d:%d]' % (40+i, 88+4*i, 91+4*i))
    a.e('s_add_u32 s46, s46, 64'); a.e('s_min_u32 s46, s46, %d' % (63*64)); vo_load()
    get_mem(a, MB)
    a.e('s_waitcnt lgkmcnt(0)'); a.e('s_barrier')
    for r in range(16): a.e('v_mov_b32 v%d, 0' % (8+r))
    for half in range(2):
        for k in range(7): a.e('ds_read_b128 v[%d:%d], v30 offset:%d' % (60+4*k, 63+4*k, MB + (half*7+k)*64))
        for k in range(7):
            a.e('s_waitcnt lgkmcnt(%d)' % (6-k))
            for hh in range(4):
                a.e('v_mfma_f32_16x16x32_bf16 v[%d:%d], v[%d:%d], %s, v[%d:%d]' % (8+4*hh, 11+4*hh, 60+4*k, 63+4*k, wfrag(hh*14+half*7+k, 64), 8+4*hh, 11+4*hh))
    a.e('s_nop 7')
    for hh in range(4):
        a.e('v_cvt_pk_bf16_f32 v%d, v%d, v%d' % (8+4*hh, 8+4*hh, 9+4*hh)); a.e('v_cvt_pk_bf16_f32 v%d, v%d, v%d' % (9+4*hh, 10+4*hh, 11+4*hh))
    a.e('s_mul_i32 s44, s41, %d' % (16*448*16))
    a.e('s_mov_b32 exec_lo, -1'); a.e('s_mov_b32 exec_hi, 0')
    for hh in range(4):
        a.e('ds_write_b64 v32, v[%d:%d] offset:%d' % (8+4*hh, 9+4*hh, hh*80))
        a.e('buffer_store_dwordx2 v[%d:%d], v33, s[28:31], s44 offen offset:%d' % (8+4*hh, 9+4*hh, 0) if hh == 0 else
            'v_add_u32 v35, %d, v33\nbuffer_store_dwordx2 v[%d:%d], v35, s[28:31], s44 offen' % (hh*448*16, 8+4*hh, 9+4*hh))
    a.e('s_mov_b64 exec, -1')
    a.e('s_lshl_b32 s42, s41, 15')
    poll(a, 5, 49, 4096, 60, 16, 42, 4, [1, 3])
    for i in range(5):
        a.e('ds_write_b32 v%d, v%d' % (44+i, 60+4*i)); a.e('ds_write_b32 v%d, v%d offset:4' % (44+i, 62+4*i))
    a.e('s_waitcnt lgkmcnt(0)'); a.e('s_barrier')
    sk = a.uniq('vs')
    a.e('s_cmp_lg_u32 s43, 0'); a.e('s_cbranch_scc1 %s' % sk)
    for r in range(4): a.e('v_mov_b32 v%d, 0' % (8+r))
    for blk in range(7):
        nk = 3 if blk < 6 else 2
        for k in range(nk):
            a.e('ds_read_b128 v[%d:%d], v31 offset:%d' % (60+8*k, 63+8*k, RT + (blk*3+k)*64))
            a.e('ds_read_b128 v[%d:%d], v31 offset:%d' % (64+8*k, 67+8*k, PT + (blk*3+k)*64))
        a.e('s_waitcnt lgkmcnt(0)')
        for k in range(nk):
            a.e('v_mfma_f32_16x16x32_bf16 v[8:11], v[%d:%d], v[%d:%d], v[8:11]' % (60+8*k, 63+8*k, 64+8*k, 67+8*k))
    a.e('s_nop 7'); a.e('s_nop 3')
    a.e('v_cvt_pk_bf16_f32 v12, v8, v9'); a.e('v_mov_b32 v13, 1'); a.e('v_cvt_pk_bf16_f32 v14, v10, v11'); a.e('v_mov_b32 v15, 1')
    a.e('s_add_u32 s42, s41, 1'); a.e('s_lshl_b32 s42, s42, 14')
    a.e('v_cmp_gt_u32 vcc, 8, v3'); a.e('s_and_b64 exec, exec, vcc')
    a.e('buffer_store_dwordx4 v[12:15], v34, s[12:15], s42 offen sc1')
    a.e('s_mov_b64 exec, -1')
    a.lab(sk)
    a.e('s_barrier')
    a.e('s_add_u32 s41, s41, 1'); a.e('s_cmp_lt_u32 s41, 64'); a.e('s_cbranch_scc1 %s_vloop' % name)
    a.lab(name + '_done')
    a.end(name, 256, 44, 25*4096, na=256)


def final(a, name):
    a.begin(name)
    a.e('s_cmp_ge_u32 s2, 256'); a.e('s_cbranch_scc1 %s_done' % name)
    a.e('s_lshr_b32 s41, s2, 2'); a.e('s_and_b32 s47, s2, 3')
    a.srd(8, D_WS, XN, 2048*896); a.srd(12, D_WS, MBMEM, MBP - MBMEM); a.srd(24, A_MEM0)
    a.srd(16, D_WS, U, 2048*14336); a.srd(20, D_WS, VOT, 7168*4096); a.srd(28, D_WS, YB, 64*16*448*16)
    a.e('v_and_b32 v1, 63, v0'); a.e('v_lshrrev_b32 v2, 6, v0'); a.e('v_and_b32 v3, 15, v0'); a.e('v_bfe_u32 v4, v0, 4, 2')
    a.e('v_lshlrev_b32 v5, 4, v0')
    for i in range(4): a.e('v_mov_b32 v%d, 0' % (8+i))
    for i in range(3): a.e('ds_write_b128 v5, v[8:11] offset:%d' % (32*HS + i*4096))
    a.e('s_waitcnt lgkmcnt(0)'); a.e('s_barrier')
    a.e('s_mul_i32 s46, s41, %d' % (32*896))
    for i in range(7):
        a.e('v_add_u32 v6, %d, v0' % (256*i)); a.e('s_mov_b32 s44, 0x%x' % ((2**32 + 55)//56)); a.e('v_mul_hi_u32 v7, v6, s44')
        a.e('v_mul_u32_u24 v8, 56, v7'); a.e('v_sub_u32 v8, v6, v8'); a.e('v_mul_u32_u24 v7, %d, v7' % HS); a.e('v_lshl_add_u32 v9, v8, 4, v7')
        bop(a, 'buffer_load_dwordx4', 'v[12:15]', 5, 8, 46, i*4096); a.e('s_waitcnt vmcnt(0)'); a.e('ds_write_b128 v9, v[12:15]')
    a.e('v_lshlrev_b32 v50, 3, v0'); a.e('v_lshlrev_b32 v51, 2, v0'); a.e('s_lshl_b32 s42, s41, 14')
    for i in range(7):
        a.e('v_add_u32 v6, %d, v0' % (256*i)); a.e('s_mov_b32 s44, 0x%x' % ((2**32 + 223)//224)); a.e('v_mul_hi_u32 v7, v6, s44')
        a.e('v_mul_u32_u24 v8, 224, v7'); a.e('v_sub_u32 v8, v6, v8'); a.e('v_mul_u32_u24 v7, %d, v7' % HS); a.e('v_lshl_add_u32 v9, v8, 2, v7')
        L = a.uniq('fm')
        a.e('s_cmp_lg_u32 s41, 0'); a.e('s_cbranch_scc1 %s_a' % L)
        bop(a, 'buffer_load_dword', 'v12', 51, 24, None, i*1024); a.e('s_branch %s_b' % L)
        a.lab(L + '_a'); bop(a, 'buffer_load_dword', 'v12', 50, 12, 42, i*2048); a.lab(L + '_b')
        a.e('s_waitcnt vmcnt(0)'); a.e('ds_write_b32 v9, v12 offset:%d' % (32*HS))
    a.e('s_waitcnt lgkmcnt(0)'); a.e('s_barrier')
    a.e('v_mul_u32_u24 v40, %d, v3' % HS); a.e('v_lshl_add_u32 v40, v4, 4, v40')
    a.e('s_lshl_b32 s44, s41, 5'); a.e('v_add_u32 v41, s44, v3'); a.e('s_mov_b32 s45, 14336'); a.e('v_mul_lo_u32 v41, v41, s45'); a.e('v_lshl_add_u32 v41, v4, 4, v41')
    a.e('v_mul_u32_u24 v6, 3584, v2'); a.e('v_add_u32 v41, v41, v6')
    a.e('s_mul_i32 s44, s47, 112'); a.e('v_mul_u32_u24 v42, 1792, v2'); a.e('v_add_u32 v42, v42, v3'); a.e('v_add_u32 v42, s44, v42'); a.e('v_mov_b32 v43, v42')
    a.e('v_lshlrev_b32 v42, 12, v42'); a.e('v_lshl_add_u32 v42, v4, 3, v42'); a.e('s_lshl_b32 s44, s41, 6'); a.e('v_add_u32 v42, s44, v42')
    a.e('v_lshlrev_b32 v43, 4, v43'); a.e('v_lshl_add_u32 v43, v4, 3, v43'); a.e('s_mul_i32 s44, s41, 114688'); a.e('v_add_u32 v43, s44, v43')
    a.e('v_cmp_lt_u32 vcc, 1, v4'); a.e('v_mov_b32 v6, 0x7f000000'); a.e('s_nop 1'); a.e('v_cndmask_b32 v44, 0, v6, vcc'); a.e('v_add_u32 v43, v43, v44')
    OA = 128
    for r in range(56): a.e('v_mov_b32 v%d, 0' % (OA + r))
    a.e('v_mov_b32 v118, 0xff800000')
    for hh in range(4):
        for r in range(24): a.e('v_mov_b32 v%d, 0' % (8 + r))
        for ks in range(14):
            for qt in range(2):
                a.e('s_mov_b32 s45, %d' % (qt*16*14336 + hh*896))
                a.e('buffer_load_dwordx4 v[%d:%d], v41, s[16:19], s45 offen offset:%d' % (60+4*qt, 63+4*qt, ks*64))
            for kt in range(3): a.e('ds_read_b128 v[%d:%d], v40 offset:%d' % (68+4*kt, 71+4*kt, kt*16*HS + ks*64))
            a.e('s_waitcnt vmcnt(0) lgkmcnt(0)')
            for kt in range(3):
                for qt in range(2):
                    c = 8 + (kt*2+qt)*4
                    a.e('v_mfma_f32_16x16x32_bf16 v[%d:%d], v[%d:%d], v[%d:%d], v[%d:%d]' % (c, c+3, 68+4*kt, 71+4*kt, 60+4*qt, 63+4*qt, c, c+3))
        a.e('s_nop 7')
        for qt in range(2):
            for kt in range(3):
                for r in range(4):
                    c = 8 + (kt*2+qt)*4 + r
                    if kt < 2:
                        a.e('v_lshl_add_u32 v6, v4, 2, %d' % (16*kt + r)); a.e('v_add_u32 v7, %d, v3' % (16*qt)); a.e('v_cmp_le_u32 vcc, v6, v7')
                    else:
                        a.e('v_cmp_gt_u32 vcc, 2, v4')
                    a.e('s_nop 1'); a.e('v_cndmask_b32 v%d, v118, v%d, vcc' % (c, c))
            regs = [8 + (kt*2+qt)*4 + r for kt in range(3) for r in range(4)]
            a.e('v_max_f32 v32, v%d, v%d' % (regs[0], regs[1]))
            for x in regs[2:]: a.e('v_max_f32 v32, v32, v%d' % x)
            def red(op):
                for m in (16, 32):
                    a.e('v_xor_b32 v33, %d, v1' % m); a.e('v_lshlrev_b32 v33, 2, v33'); a.e('ds_bpermute_b32 v34, v33, v32'); a.e('s_waitcnt lgkmcnt(0)'); a.e('%s v32, v32, v34' % op)
            red('v_max_f32')
            for x in regs:
                a.e('v_sub_f32 v%d, v%d, v32' % (x, x)); a.e('v_mul_f32 v%d, 0x3fb8aa3b, v%d' % (x, x)); a.e('v_exp_f32 v%d, v%d' % (x, x))
            a.e('s_nop 0'); a.e('v_add_f32 v32, v%d, v%d' % (regs[0], regs[1]))
            for x in regs[2:]: a.e('v_add_f32 v32, v32, v%d' % x)
            red('v_add_f32')
            a.e('v_rcp_f32 v32, v32'); a.e('s_nop 0')
            for x in regs: a.e('v_mul_f32 v%d, v%d, v32' % (x, x))
            pb = 80 + 8*qt
            for kt in range(3):
                c = 8 + (kt*2+qt)*4
                a.e('v_cvt_pk_bf16_f32 v%d, v%d, v%d' % (pb+2*kt, c, c+1)); a.e('v_cvt_pk_bf16_f32 v%d, v%d, v%d' % (pb+2*kt+1, c+2, c+3))
            a.e('v_mov_b32 v%d, 0' % (pb+6)); a.e('v_mov_b32 v%d, 0' % (pb+7))
        a.e('v_mov_b32 v102, 0'); a.e('v_mov_b32 v103, 0')
        for jt in range(7):
            a.e('s_mov_b32 s45, %d' % ((hh*448 + jt*16)*4096))
            a.e('buffer_load_dwordx2 v[96:97], v42, s[20:23], s45 offen'); a.e('buffer_load_dwordx2 v[98:99], v42, s[20:23], s45 offen offset:32')
            a.e('s_mov_b32 s45, %d' % ((hh*448 + jt*16)*16))
            a.e('buffer_load_dwordx2 v[100:101], v43, s[28:31], s45 offen')
            a.e('s_waitcnt vmcnt(0)')
            for qt in range(2):
                c = OA + (jt*2+qt)*4; pb = 80 + 8*qt
                a.e('v_mfma_f32_16x16x32_bf16 v[%d:%d], v[96:99], v[%d:%d], v[%d:%d]' % (c, c+3, pb, pb+3, c, c+3))
                a.e('v_mfma_f32_16x16x32_bf16 v[%d:%d], v[100:103], v[%d:%d], v[%d:%d]' % (c, c+3, pb+4, pb+7, c, c+3))
    a.e('s_nop 7'); a.e('s_nop 3'); a.e('s_barrier')
    QS = 464
    a.e('v_mul_u32_u24 v5, %d, v2' % (32*QS)); a.e('v_mul_u32_u24 v6, %d, v3' % QS); a.e('v_add_u32 v5, v5, v6'); a.e('v_lshl_add_u32 v5, v4, 4, v5')
    for jt in range(7):
        for qt in range(2):
            c = OA + (jt*2+qt)*4
            a.e('ds_write_b128 v5, v[%d:%d] offset:%d' % (c, c+3, qt*16*QS + jt*64))
    a.e('s_waitcnt lgkmcnt(0)'); a.e('s_barrier')
    a.srd(8, A_X); a.srd(12, D_WS, BO, 2048*896); a.srd(16, D_OUT)
    for it in range(4):
        a.e('v_add_u32 v6, %d, v0' % (256*it)); a.e('s_mov_b32 s44, 0x%x' % ((2**32 + 27)//28)); a.e('v_mul_hi_u32 v7, v6, s44')
        a.e('v_mul_u32_u24 v8, 28, v7'); a.e('v_sub_u32 v8, v6, v8')
        a.e('v_cmp_gt_u32 vcc, 896, v6'); a.e('s_mov_b64 s[36:37], exec'); a.e('s_and_b64 exec, exec, vcc')
        a.e('v_mul_u32_u24 v9, %d, v7' % QS); a.e('v_lshl_add_u32 v9, v8, 4, v9')
        for w in range(4): a.e('ds_read_b128 v[%d:%d], v9 offset:%d' % (12+4*w, 15+4*w, w*32*QS))
        a.e('s_lshl_b32 s44, s41, 5'); a.e('v_add_u32 v10, s44, v7'); a.e('v_mul_u32_u24 v10, 896, v10'); a.e('v_lshl_add_u32 v10, v8, 3, v10'); a.e('s_mul_i32 s44, s47, 224'); a.e('v_add_u32 v10, s44, v10')
        a.e('buffer_load_dwordx2 v[30:31], v10, s[8:11], 0 offen'); a.e('buffer_load_dwordx2 v[32:33], v10, s[12:15], 0 offen')
        a.e('s_waitcnt vmcnt(0) lgkmcnt(0)')
        for r in range(4):
            a.e('v_add_f32 v%d, v%d, v%d' % (12+r, 12+r, 16+r)); a.e('v_add_f32 v%d, v%d, v%d' % (20+r, 20+r, 24+r)); a.e('v_add_f32 v%d, v%d, v%d' % (12+r, 12+r, 20+r))
        def unpack(dst, src):
            for r in range(4):
                if r & 1: a.e('v_and_b32 v%d, 0xffff0000, v%d' % (dst+r, src+(r>>1)))
                else: a.e('v_lshlrev_b32 v%d, 16, v%d' % (dst+r, src+(r>>1)))
        def rnd():
            a.e('v_cvt_pk_bf16_f32 v34, v12, v13'); a.e('v_cvt_pk_bf16_f32 v35, v14, v15')
        rnd(); unpack(12, 34); unpack(16, 30)
        for r in range(4): a.e('v_add_f32 v%d, v%d, v%d' % (12+r, 12+r, 16+r))
        rnd(); unpack(12, 34); unpack(16, 32)
        for r in range(4): a.e('v_add_f32 v%d, v%d, v%d' % (12+r, 12+r, 16+r))
        rnd()
        a.e('buffer_store_dwordx2 v[34:35], v10, s[16:19], 0 offen')
        a.e('s_mov_b64 exec, s[36:37]')
    a.lab(name + '_done')
    a.end(name, 184, 256, 4*32*464)
```

```python
KNAME = "parallel_sum__memory_aug_recurrent_mem_tr__dense_activation_gelu__prompt_kernel"
A_X, A_MEM0, A_WQ, A_WK, A_WV, A_WO, A_SEG, B_X, B_W1, B_B1, B_W2, B_B2, D_OUT, D_DBG, D_WS = range(15)
SIZES = {A_X: 2048*448*2, A_MEM0: 8*448*2, A_WQ: 448*4096*2, A_WK: 448*4096*2, A_WV: 448*4096*2, A_WO: 448*4096*2,
         B_W1: 448*1792*2, B_B1: 1792*2, B_W2: 448*1792*2, B_B2: 448*2, D_OUT: 2048*448*2, D_DBG: 256, D_WS: 268435456}
XN = 0x0; AT = 0x200000; WVT = 0x900000; WOT = 0x1000000; W1T = 0x1400000; W2T = 0x1600000
H1 = 0x1800000; BO = 0x2000000; U = 0x2200000; VOT = 0x4000000
MBMEM = 0x6000000; MBMEM_SLOT = 0x4000; MBP = 0x6200000; MBP_SLOT = 0x8000; YB = 0x6800000
MB_END = 0x6400000

class Asm:
    def __init__(self):
        self.l = []; self.k = []; self.launch = []; self.n = 0
    def e(self, s):
        for x in s.strip('\n').split('\n'):
            self.l.append('    ' + x.strip())
    def lab(self, s): self.l.append(s + ':')
    def uniq(self, p):
        self.n += 1; return '%s_%d' % (p, self.n)
    def begin(self, name):
        self.l += ['.text', '.globl ' + name, '.p2align 8', '.type %s,@function' % name, name + ':']
    def end(self, name, nv, grid, lds, na=0, block=256, ns=102):
        self.e('s_endpgm')
        acc = (nv + 3) // 4 * 4
        self.k.append(""".section .rodata,"a"
.p2align 6
.amdhsa_kernel %s
  .amdhsa_next_free_vgpr %d
  .amdhsa_next_free_sgpr %d
  .amdhsa_accum_offset %d
  .amdhsa_group_segment_fixed_size 0
  .amdhsa_kernarg_size 120
  .amdhsa_user_sgpr_count 2
  .amdhsa_user_sgpr_kernarg_segment_ptr 1
  .amdhsa_system_sgpr_workgroup_id_x 1
.end_amdhsa_kernel""" % (name, acc + na if na else nv, ns, acc))
        self.launch.append('; @launch kernel=%s grid=(%d,1,1) block=(%d,1,1) lds=%d' % (name, grid, block, lds))
    def srd(self, s, slot, off=0, size=None, tmp=None):
        if size is None: size = SIZES[slot] - off
        self.e('s_load_dwordx2 s[%d:%d], s[0:1], %d' % (s, s+1, slot*8))
        self.e('s_waitcnt lgkmcnt(0)')
        if off:
            self.e('s_add_u32 s%d, s%d, 0x%x' % (s, s, off))
            self.e('s_addc_u32 s%d, s%d, 0' % (s+1, s+1))
        self.e('s_and_b32 s%d, s%d, 0xffff' % (s+1, s+1))
        self.e('s_mov_b32 s%d, 0x%x' % (s+2, size))
        self.e('s_mov_b32 s%d, 0x00020000' % (s+3))
    def text(self, header):
        return header + '\n'.join(self.launch) + '\n.amdgcn_target "amdgcn-amd-amdhsa--gfx950"\n' + '\n'.join(self.l) + '\n' + '\n'.join(self.k) + '\n'

def divmod_s(a, sq, sr, ssrc, d, stmp):
    magic = (2**32 + d - 1) // d
    a.e('s_mul_hi_u32 s%d, s%d, 0x%x' % (sq, ssrc, magic))
    a.e('s_mul_i32 s%d, s%d, %d' % (stmp, sq, d))
    a.e('s_sub_u32 s%d, s%d, s%d' % (sr, ssrc, stmp))

def gemm(a, name, A, B, O, M, N, K, batch, TM, TN, epi=None, bias=None):
    tm, tn = M // TM, N // TN
    grid = tm * tn * batch
    a.begin(name)
    a.e('s_cmp_ge_u32 s2, %d' % grid); a.e('s_cbranch_scc1 %s_done' % name)
    divmod_s(a, 20, 23, 2, tm * tn, 24)
    divmod_s(a, 22, 21, 23, tm, 24)
    a.srd(8, A[0], A[1]); a.srd(12, B[0], B[1]); a.srd(16, O[0], O[1])
    if bias is not None: a.srd(28, bias[0], 0)
    LS = 144
    nA, nB = TM * 8 // 256, TN * 8 // 256
    bufsz = (TM + TN) * LS
    a.e('v_lshrrev_b32 v4, 3, v0')
    a.e('v_and_b32 v5, 7, v0')
    a.e('v_lshlrev_b32 v5, 4, v5')
    a.e('s_mul_i32 s24, s21, %d' % (TM * A[2])); a.e('s_mul_i32 s25, s20, %d' % A[3]); a.e('s_add_u32 s24, s24, s25')
    a.e('s_mov_b32 s26, %d' % A[2]); a.e('v_mul_lo_u32 v1, v4, s26'); a.e('v_add_u32 v1, v1, v5'); a.e('v_add_u32 v1, s24, v1')
    a.e('s_mul_i32 s24, s22, %d' % (TN * B[2])); a.e('s_mul_i32 s25, s20, %d' % B[3]); a.e('s_add_u32 s24, s24, s25')
    a.e('s_mov_b32 s26, %d' % B[2]); a.e('v_mul_lo_u32 v2, v4, s26'); a.e('v_add_u32 v2, v2, v5'); a.e('v_add_u32 v2, s24, v2')
    a.e('v_mul_u32_u24 v3, %d, v4' % LS); a.e('v_add_u32 v3, v3, v5')
    WM, WN = TM // 2, TN // 2
    a.e('v_lshrrev_b32 v6, 6, v0'); a.e('v_and_b32 v7, 1, v6'); a.e('v_lshrrev_b32 v6, 1, v6')
    a.e('v_and_b32 v8, 31, v0'); a.e('v_bfe_u32 v9, v0, 5, 1'); a.e('v_lshlrev_b32 v10, 4, v9')
    a.e('v_mul_u32_u24 v11, %d, v7' % WM); a.e('v_add_u32 v11, v11, v8'); a.e('v_mul_u32_u24 v11, %d, v11' % LS); a.e('v_add_u32 v11, v11, v10')
    a.e('v_mul_u32_u24 v12, %d, v6' % WN); a.e('v_add_u32 v12, v12, v8'); a.e('v_mul_u32_u24 v12, %d, v12' % LS); a.e('v_add_u32 v12, v12, v10')
    a.e('v_add_u32 v12, %d, v12' % (TM * LS))
    ti, tj = WM // 32, WN // 32
    a.e('v_add_u32 v15, %d, v3' % bufsz); a.e('v_add_u32 v16, %d, v11' % bufsz); a.e('v_add_u32 v17, %d, v12' % bufsz)
    ACC = 20; nacc = ti * tj * 16
    FA = ACC + nacc; FB = FA + 4 * ti; ST = FB + 4 * tj
    nv = ST + 4 * (nA + nB)
    for r in range(nacc): a.e('v_mov_b32 v%d, 0' % (ACC + r))
    def gload(kc):
        a.e('s_mov_b32 s27, %d' % (kc * 128))
        for i in range(nA):
            a.e('v_add_u32 v13, %d, v1' % (i * 32 * A[2])) if i else None
            a.e('buffer_load_dwordx4 v[%d:%d], v%d, s[8:11], s27 offen' % (ST + 4*i, ST + 4*i + 3, 13 if i else 1))
        for i in range(nB):
            a.e('v_add_u32 v14, %d, v2' % (i * 32 * B[2])) if i else None
            a.e('buffer_load_dwordx4 v[%d:%d], v%d, s[12:15], s27 offen' % (ST + 4*(nA+i), ST + 4*(nA+i) + 3, 14 if i else 2))
    def lstore(buf):
        for i in range(nA):
            a.e('ds_write_b128 v%d, v[%d:%d] offset:%d' % (15 if buf else 3, ST + 4*i, ST + 4*i + 3, i*32*LS))
        for i in range(nB):
            a.e('ds_write_b128 v%d, v[%d:%d] offset:%d' % (15 if buf else 3, ST + 4*(nA+i), ST + 4*(nA+i) + 3, TM*LS + i*32*LS))
    nK = K // 64
    gload(0); a.e('s_waitcnt vmcnt(0)'); lstore(0); a.e('s_waitcnt lgkmcnt(0)'); a.e('s_barrier')
    for kc in range(nK):
        buf = kc & 1
        if kc + 1 < nK: gload(kc + 1)
        for ks in range(4):
            for i in range(ti): a.e('ds_read_b128 v[%d:%d], v%d offset:%d' % (FA+4*i, FA+4*i+3, 16 if buf else 11, i*32*LS + ks*32))
            for j in range(tj): a.e('ds_read_b128 v[%d:%d], v%d offset:%d' % (FB+4*j, FB+4*j+3, 17 if buf else 12, j*32*LS + ks*32))
            a.e('s_waitcnt lgkmcnt(0)')
            for i in range(ti):
                for j in range(tj):
                    c = ACC + (i*tj + j) * 16
                    a.e('v_mfma_f32_32x32x16_bf16 v[%d:%d], v[%d:%d], v[%d:%d], v[%d:%d]' % (c, c+15, FA+4*i, FA+4*i+3, FB+4*j, FB+4*j+3, c, c+15))
        if kc + 1 < nK:
            a.e('s_waitcnt vmcnt(0)'); lstore(buf ^ 1); a.e('s_waitcnt lgkmcnt(0)'); a.e('s_barrier')
    a.e('s_nop 15'); a.e('s_nop 7')
    a.e('s_mul_i32 s24, s22, %d' % TN); a.e('v_mul_u32_u24 v1, %d, v6' % WN); a.e('v_add_u32 v1, v1, v8'); a.e('v_add_u32 v1, s24, v1')
    a.e('s_mov_b32 s26, %d' % O[2]); a.e('v_mul_lo_u32 v1, v1, s26')
    a.e('s_mul_i32 s24, s21, %d' % TM); a.e('v_mul_u32_u24 v2, %d, v7' % WM); a.e('v_lshl_add_u32 v2, v9, 2, v2'); a.e('v_add_u32 v2, s24, v2')
    a.e('v_lshlrev_b32 v2, 1, v2')
    a.e('s_mul_i32 s25, s20, %d' % O[3]); a.e('v_add_u32 v1, v1, v2'); a.e('v_add_u32 v1, s25, v1')
    T = FA
    for i in range(ti):
        for j in range(tj):
            c = ACC + (i*tj + j) * 16
            for g in range(4):
                r = c + 4*g
                moff = (i*32 + 8*g) * 2
                if bias is not None:
                    a.e('buffer_load_dwordx2 v[%d:%d], v2, s[28:31], 0 offen offset:%d' % (T, T+1, moff))
                if epi == 'scale':
                    for q in range(4): a.e('v_mul_f32 v%d, 0x3d800000, v%d' % (r+q, r+q))
                if bias is not None:
                    a.e('v_cvt_pk_bf16_f32 v%d, v%d, v%d' % (T+2, r, r+1)); a.e('v_cvt_pk_bf16_f32 v%d, v%d, v%d' % (T+3, r+2, r+3))
                    a.e('s_waitcnt vmcnt(0)')
                    for q in range(4):
                        src = T + 2 + (q >> 1); bs = T + (q >> 1)
                        if q & 1:
                            a.e('v_and_b32 v%d, 0xffff0000, v%d' % (r+q, src)); a.e('v_and_b32 v%d, 0xffff0000, v%d' % (T+4, bs))
                        else:
                            a.e('v_lshlrev_b32 v%d, 16, v%d' % (r+q, src)); a.e('v_lshlrev_b32 v%d, 16, v%d' % (T+4, bs))
                        a.e('v_add_f32 v%d, v%d, v%d' % (r+q, r+q, T+4))
                    if epi == 'gelu':
                        a.e('v_cvt_pk_bf16_f32 v%d, v%d, v%d' % (T+2, r, r+1)); a.e('v_cvt_pk_bf16_f32 v%d, v%d, v%d' % (T+3, r+2, r+3))
                        for q in range(4):
                            src = T + 2 + (q >> 1)
                            if q & 1: a.e('v_and_b32 v%d, 0xffff0000, v%d' % (r+q, src))
                            else: a.e('v_lshlrev_b32 v%d, 16, v%d' % (r+q, src))
                            a.e('v_mul_f32 v%d, v%d, v%d' % (T+4, r+q, r+q))
                            a.e('v_mul_f32 v%d, 0x3d372713, v%d' % (T+4, T+4))
                            a.e('v_fma_f32 v%d, v%d, v%d, v%d' % (T+4, T+4, r+q, r+q))
                            a.e('v_mul_f32 v%d, 0xc0135761, v%d' % (T+4, T+4))
                            a.e('v_exp_f32 v%d, v%d' % (T+4, T+4)); a.e('s_nop 0')
                            a.e('v_add_f32 v%d, 1.0, v%d' % (T+4, T+4))
                            a.e('v_rcp_f32 v%d, v%d' % (T+4, T+4)); a.e('s_nop 0')
                            a.e('v_mul_f32 v%d, v%d, v%d' % (r+q, r+q, T+4))
                a.e('v_cvt_pk_bf16_f32 v%d, v%d, v%d' % (T+2, r, r+1)); a.e('v_cvt_pk_bf16_f32 v%d, v%d, v%d' % (T+3, r+2, r+3))
                if j:
                    a.e('s_mov_b32 s26, %d' % (j * 32 * O[2]))
                    a.e('buffer_store_dwordx2 v[%d:%d], v1, s[16:19], s26 offen offset:%d' % (T+2, T+3, moff))
                else:
                    a.e('buffer_store_dwordx2 v[%d:%d], v1, s[16:19], 0 offen offset:%d' % (T+2, T+3, moff))
                a.e('s_waitcnt vmcnt(0)')
    a.lab(name + '_done')
    a.end(name, nv, grid, 2 * bufsz)
```

```python
from lib import *
def prep(a, name):
    NLN = 512; NT = [448, 196, 196]; NCL = 256
    grid = NLN + sum(NT) + NCL
    a.begin(name)
    a.e('s_cmp_ge_u32 s2, %d' % grid); a.e('s_cbranch_scc1 %s_done' % name)
    a.e('s_cmp_ge_u32 s2, %d' % NLN); a.e('s_cbranch_scc1 %s_tr' % name)
    a.srd(8, A_X); a.srd(12, D_WS, XN, 2048*896)
    a.e('v_lshrrev_b32 v1, 6, v0'); a.e('s_lshl_b32 s3, s2, 2'); a.e('v_add_u32 v1, s3, v1')
    a.e('v_and_b32 v2, 63, v0')
    a.e('v_mul_u32_u24 v3, 896, v1'); a.e('v_lshl_add_u32 v3, v2, 4, v3')
    a.e('v_cmp_gt_u32 vcc, 56, v2'); a.e('s_mov_b64 s[20:21], exec')
    for i in range(4): a.e('v_mov_b32 v%d, 0' % (4+i))
    a.e('s_and_b64 exec, exec, vcc')
    a.e('buffer_load_dwordx4 v[4:7], v3, s[8:11], 0 offen')
    a.e('s_waitcnt vmcnt(0)')
    a.e('s_mov_b64 exec, s[20:21]')
    for i in range(4):
        a.e('v_lshlrev_b32 v%d, 16, v%d' % (8+2*i, 4+i)); a.e('v_and_b32 v%d, 0xffff0000, v%d' % (9+2*i, 4+i))
    def wsum(src):
        a.e('v_add_f32 v20, v%d, v%d' % (src[0], src[1]))
        for s in src[2:]: a.e('v_add_f32 v20, v20, v%d' % s)
        for m in (1, 2, 4, 8, 16, 32):
            a.e('v_xor_b32 v21, %d, v2' % m); a.e('v_lshlrev_b32 v21, 2, v21')
            a.e('ds_bpermute_b32 v22, v21, v20'); a.e('s_waitcnt lgkmcnt(0)'); a.e('v_add_f32 v20, v20, v22')
    wsum(list(range(8, 16)))
    a.e('v_mul_f32 v23, 0x3b124925, v20')
    for i in range(8):
        a.e('v_sub_f32 v%d, v%d, v23' % (24+i, 8+i)); a.e('v_mul_f32 v%d, v%d, v%d' % (24+i, 24+i, 24+i))
        a.e('v_cndmask_b32 v%d, 0, v%d, vcc' % (24+i, 24+i))
    wsum(list(range(24, 32)))
    a.e('v_mul_f32 v20, 0x3b124925, v20')
    a.e('v_cvt_pk_bf16_f32 v20, v20, v23'); a.e('v_and_b32 v23, 0xffff0000, v20'); a.e('v_lshlrev_b32 v20, 16, v20')
    a.e('v_add_f32 v20, 0x3727c5ac, v20'); a.e('v_cvt_pk_bf16_f32 v20, v20, v20'); a.e('v_lshlrev_b32 v20, 16, v20')
    a.e('v_sqrt_f32 v20, v20'); a.e('s_nop 0'); a.e('v_cvt_pk_bf16_f32 v20, v20, v20'); a.e('v_lshlrev_b32 v20, 16, v20')
    a.e('v_rcp_f32 v20, v20'); a.e('s_nop 0')
    for i in range(8): a.e('v_sub_f32 v%d, v%d, v23' % (8+i, 8+i))
    for i in range(4):
        a.e('v_cvt_pk_bf16_f32 v4, v%d, v%d' % (8+2*i, 9+2*i))
        a.e('v_lshlrev_b32 v%d, 16, v4' % (8+2*i)); a.e('v_and_b32 v%d, 0xffff0000, v4' % (9+2*i))
        a.e('v_mul_f32 v%d, v%d, v20' % (8+2*i, 8+2*i)); a.e('v_mul_f32 v%d, v%d, v20' % (9+2*i, 9+2*i))
    for i in range(4): a.e('v_cvt_pk_bf16_f32 v%d, v%d, v%d' % (4+i, 8+2*i, 9+2*i))
    a.e('s_and_b64 exec, exec, vcc')
    a.e('buffer_store_dwordx4 v[4:7], v3, s[12:15], 0 offen')
    a.e('s_branch %s_done' % name)
    a.lab(name + '_tr')
    a.e('s_sub_u32 s3, s2, %d' % NLN)
    specs = [(A_WO, WOT, 256, 448, 16), (B_W1, W1T, 448, 1792, 1), (B_W2, W2T, 1792, 448, 1)]
    base = 0
    for idx, (slot, dst, R, C, nb) in enumerate(specs):
        nxt = '%s_tr%d' % (name, idx + 1)
        a.e('s_cmp_ge_u32 s3, %d' % (base + NT[idx])); a.e('s_cbranch_scc1 %s' % nxt)
        a.e('s_sub_u32 s4, s3, %d' % base)
        tr, tc = R // 64, C // 64
        divmod_s(a, 20, 23, 4, tr * tc, 24); divmod_s(a, 21, 22, 23, tc, 24)
        a.srd(8, slot); a.srd(12, D_WS, dst, R*C*2*nb)
        a.e('s_mul_i32 s24, s20, %d' % (R*C*2)); a.e('s_mul_i32 s25, s21, %d' % (64*C*2)); a.e('s_add_u32 s24, s24, s25'); a.e('s_lshl_b32 s25, s22, 7'); a.e('s_add_u32 s24, s24, s25')
        a.e('v_lshrrev_b32 v1, 3, v0'); a.e('v_and_b32 v2, 7, v0'); a.e('v_lshlrev_b32 v2, 4, v2')
        a.e('s_mov_b32 s26, %d' % (C*2)); a.e('v_mul_lo_u32 v3, v1, s26'); a.e('v_add_u32 v3, v3, v2'); a.e('v_add_u32 v3, s24, v3')
        a.e('v_add_u32 v4, %d, v3' % (32*C*2))
        a.e('buffer_load_dwordx4 v[8:11], v3, s[8:11], 0 offen'); a.e('buffer_load_dwordx4 v[12:15], v4, s[8:11], 0 offen')
        a.e('v_mul_u32_u24 v5, 144, v1'); a.e('v_add_u32 v5, v5, v2')
        a.e('s_waitcnt vmcnt(0)')
        a.e('ds_write_b128 v5, v[8:11]'); a.e('ds_write_b128 v5, v[12:15] offset:%d' % (32*144))
        a.e('s_waitcnt lgkmcnt(0)'); a.e('s_barrier')
        a.e('v_lshrrev_b32 v1, 2, v0'); a.e('v_and_b32 v2, 3, v0')
        a.e('v_mul_u32_u24 v5, %d, v2' % (16*144)); a.e('v_lshl_add_u32 v5, v1, 1, v5')
        for r in range(16):
            a.e('ds_read_u16 v%d, v5 offset:%d' % (16 + r, r*144))
        a.e('s_mul_i32 s24, s20, %d' % (R*C*2)); a.e('s_mul_i32 s25, s22, %d' % (64*R*2)); a.e('s_add_u32 s24, s24, s25'); a.e('s_lshl_b32 s25, s21, 7'); a.e('s_add_u32 s24, s24, s25')
        a.e('s_mov_b32 s26, %d' % (R*2)); a.e('v_mul_lo_u32 v3, v1, s26'); a.e('v_lshl_add_u32 v3, v2, 5, v3'); a.e('v_add_u32 v3, s24, v3')
        a.e('s_waitcnt lgkmcnt(0)')
        for r in range(8): a.e('v_lshl_or_b32 v%d, v%d, 16, v%d' % (8 + r, 17 + 2*r, 16 + 2*r))
        a.e('buffer_store_dwordx4 v[8:11], v3, s[12:15], 0 offen'); a.e('buffer_store_dwordx4 v[12:15], v3, s[12:15], 0 offen offset:16')
        a.e('s_branch %s_done' % name)
        a.lab(nxt)
        base += NT[idx]
    a.e('s_sub_u32 s4, s3, %d' % base)
    a.srd(12, D_WS, MBMEM, MB_END - MBMEM)
    a.e('s_lshl_b32 s4, s4, 14'); a.e('v_lshlrev_b32 v1, 4, v0'); a.e('v_add_u32 v1, s4, v1')
    for i in range(4): a.e('v_mov_b32 v%d, 0' % (4+i))
    for i in range(4): a.e('buffer_store_dwordx4 v[4:7], v1, s[12:15], 0 offen offset:%d' % (i*4096 if i*4096 < 4096 else 0) if i == 0 else 'v_add_u32 v1, 4096, v1\nbuffer_store_dwordx4 v[4:7], v1, s[12:15], 0 offen')
    a.lab(name + '_done')
    a.end(name, 32, grid, 64*144)
```

```python
from lib import *
from prep import prep
import sys
hdr = open('parallel_sum__memory_aug_recurrent_mem_tr__dense_activation_gelu__prompt.s.ref').read().split('; @launch')[0]
a = Asm()
prep(a, 'prep_kernel')
gemm(a, 'gat_kernel', (A_WQ, 0, 8192, 512), (A_WK, 0, 8192, 512), (D_WS, AT, 896, 448*896), 448, 448, 256, 16, 64, 64, epi='scale')
gemm(a, 'gwv_kernel', (A_WV, 0, 8192, 512), (D_WS, WOT, 512, 448*512), (D_WS, WVT, 896, 448*896), 448, 448, 256, 16, 64, 64)
gemm(a, 'gu_kernel', (D_WS, AT, 896, 0), (D_WS, XN, 896, 0), (D_WS, U, 7168*2, 0), 7168, 2048, 448, 1, 128, 128)
gemm(a, 'gvo_kernel', (D_WS, XN, 896, 0), (D_WS, WVT, 896, 0), (D_WS, VOT, 4096, 0), 2048, 7168, 448, 1, 128, 128)
gemm(a, 'gf1_kernel', (D_WS, W1T, 896, 0), (D_WS, XN, 896, 0), (D_WS, H1, 3584, 0), 1792, 2048, 448, 1, 128, 128, epi='gelu', bias=(B_B1,))
gemm(a, 'gf2_kernel', (D_WS, W2T, 3584, 0), (D_WS, H1, 3584, 0), (D_WS, BO, 896, 0), 448, 2048, 1792, 1, 64, 64, bias=(B_B2,))
try:
    from chain import chain, final
    chain(a, 'chain_kernel'); final(a, KNAME)
except ImportError:
    pass
open('parallel_sum__memory_aug_recurrent_mem_tr__dense_activation_gelu__prompt.s', 'w').write(a.text(hdr))
```

```python
from lib import *
HS = 912
def bop(a, op, regs, va, srd, sb, off, fl=''):
    if off >= 4096:
        a.e('s_add_u32 s39, %s, %d' % ('s%d' % sb if sb is not None else '0', off & ~4095)); sb = 39; off &= 4095
    a.e('%s %s, v%d, s[%d:%d], %s offen offset:%d %s' % (op, regs, va, srd, srd+3, 's%d' % sb if sb is not None else '0', off, fl))
def poll(a, nload, vaddr0, step_bytes, dst, srd, soff, width, tagpos):
    L = a.uniq('poll')
    a.e('s_mov_b32 s40, 0')
    a.lab(L)
    for i in range(nload):
        bop(a, 'buffer_load_dwordx%d' % width, 'v[%d:%d]' % (dst+width*i, dst+width*i+width-1), vaddr0, srd, soff, i*step_bytes, 'sc1')
    a.e('s_waitcnt vmcnt(0)')
    first = True
    for i in range(nload):
        for t in tagpos:
            r = dst + width*i + t
            if first: a.e('v_mov_b32 v119, v%d' % r); first = False
            else: a.e('v_and_b32 v119, v119, v%d' % r)
    a.e('v_cmp_ne_u32 vcc, 1, v119')
    a.e('s_add_u32 s40, s40, 1')
    a.e('s_cmp_gt_u32 s40, 0x100000')
    a.e('s_cbranch_scc1 %s_x' % L)
    a.e('s_cbranch_vccnz %s' % L)
    a.lab(L + '_x')

def wfrag(idx, na):
    if idx < na: return 'a[%d:%d]' % (4*idx, 4*idx+3)
    r = 120 + 4*(idx - na); return 'v[%d:%d]' % (r, r+3)

def get_mem(a, ldsoff):
    L = a.uniq('gm')
    a.e('s_cmp_lg_u32 s41, 0'); a.e('s_cbranch_scc1 %s_p' % L)
    for i in range(7):
        bop(a, 'buffer_load_dword', 'v%d' % (60+2*i), 51, 24, None, i*1024)
    a.e('s_waitcnt vmcnt(0)')
    a.e('s_branch %s_w' % L)
    a.lab(L + '_p')
    a.e('s_lshl_b32 s42, s41, 14')
    poll(a, 7, 50, 2048, 60, 12, 42, 2, [1])
    a.lab(L + '_w')
    for i in range(7): a.e('ds_write_b32 v%d, v%d offset:%d' % (52+i, 60+2*i, ldsoff))

def chain(a, name, extra):
    a.begin(name)
    a.e('s_cmp_ge_u32 s2, 44'); a.e('s_cbranch_scc1 x_gf2')
    a.srd(12, D_WS, MBMEM, MBP - MBMEM); a.srd(16, D_WS, MBP, MB_END - MBP); a.srd(24, A_MEM0)
    a.e('v_lshlrev_b32 v50, 3, v0'); a.e('v_lshlrev_b32 v51, 2, v0')
    a.e('v_and_b32 v1, 63, v0'); a.e('v_lshrrev_b32 v2, 6, v0'); a.e('v_and_b32 v3, 15, v0'); a.e('v_bfe_u32 v4, v0, 4, 2')
    a.e('s_nop 0'); a.e('v_readfirstlane_b32 s43, v2')
    a.e('v_lshlrev_b32 v5, 4, v0')
    for i in range(4): a.e('v_mov_b32 v%d, 0' % (8+i))
    for i in range(16): a.e('ds_write_b128 v5, v[8:11] offset:%d' % (i*4096))
    a.e('v_add_u32 v5, 0x10000, v5')
    for i in range(9): a.e('ds_write_b128 v5, v[8:11] offset:%d' % (i*4096))
    a.e('s_waitcnt lgkmcnt(0)'); a.e('s_barrier')
    for i in range(7):
        a.e('v_add_u32 v6, %d, v0' % (256*i)); a.e('s_mov_b32 s44, 0x%x' % ((2**32 + 223)//224)); a.e('v_mul_hi_u32 v7, v6, s44')
        a.e('v_mul_u32_u24 v8, 224, v7'); a.e('v_sub_u32 v8, v6, v8'); a.e('v_mul_u32_u24 v7, %d, v7' % HS); a.e('v_lshl_add_u32 v%d, v8, 2, v7' % (52+i))
    a.e('s_cmp_ge_u32 s2, 16'); a.e('s_cbranch_scc1 %s_val' % name)
    HB = [0, 48*HS]; RED = 2*48*HS
    a.srd(8, D_WS, AT, 16*448*896); a.srd(20, D_WS, XN, 2048*896)
    a.e('s_mul_i32 s44, s2, %d' % (448*896)); a.e('s_mul_i32 s45, s43, %d' % (112*896)); a.e('s_add_u32 s44, s44, s45')
    a.e('v_mul_u32_u24 v6, 896, v3'); a.e('v_lshl_add_u32 v6, v4, 4, v6'); a.e('v_add_u32 v6, s44, v6')
    for t in range(7):
        for ks in range(14):
            a.e('buffer_load_dwordx4 %s, v6, s[8:11], 0 offen offset:%d' % (wfrag(t*14+ks, 64), ks*64))
        a.e('v_add_u32 v6, %d, v6' % (16*896))
    for i in range(7): a.e('v_add_u32 v%d, %d, v%d' % (52+i, 32*HS, 52+i))
    XA = [36, 37, 38, 39, 47, 48, 59]
    for i in range(7):
        a.e('v_add_u32 v6, %d, v0' % (256*i)); a.e('s_mov_b32 s44, 0x%x' % ((2**32 + 55)//56)); a.e('v_mul_hi_u32 v7, v6, s44')
        a.e('v_mul_u32_u24 v8, 56, v7'); a.e('v_sub_u32 v8, v6, v8'); a.e('v_mul_u32_u24 v7, %d, v7' % HS); a.e('v_lshl_add_u32 v%d, v8, 4, v7' % XA[i])
    a.e('v_lshlrev_b32 v49, 4, v0')
    def xs_load():
        for i in range(7): bop(a, 'buffer_load_dwordx4', 'v[%d:%d]' % (88+4*i, 91+4*i), 49, 20, 46, i*4096)
    def xs_store(buf):
        for i in range(7): a.e('ds_write_b128 v%d, v[%d:%d] offset:%d' % (XA[i], 88+4*i, 91+4*i, HB[buf]))
    a.e('s_mov_b32 s46, 0'); xs_load(); a.e('s_waitcnt vmcnt(0)'); xs_store(0)
    a.e('s_mov_b32 s46, %d' % (32*896)); xs_load()
    a.e('v_add_u32 v40, 32, v3'); a.e('v_mul_u32_u24 v40, %d, v40' % HS); a.e('v_lshl_add_u32 v40, v4, 4, v40')
    a.e('v_mul_u32_u24 v41, %d, v3' % HS); a.e('v_lshl_add_u32 v41, v4, 3, v41'); a.e('v_mul_u32_u24 v6, 224, v2'); a.e('v_add_u32 v41, v41, v6')
    a.e('v_mul_u32_u24 v42, 3072, v2'); a.e('v_lshl_add_u32 v42, v4, 8, v42'); a.e('v_lshl_add_u32 v42, v3, 2, v42'); a.e('v_add_u32 v42, %d, v42' % RED)
    a.e('v_and_b32 v43, 7, v1'); a.e('v_bfe_u32 v44, v1, 3, 2'); a.e('v_mul_u32_u24 v45, 640, v44'); a.e('v_lshl_add_u32 v45, v43, 2, v45'); a.e('v_add_u32 v45, %d, v45' % RED)
    a.e('v_mul_u32_u24 v46, 20, v43'); a.e('v_mul_u32_u24 v6, 5, v44'); a.e('v_add_u32 v46, v46, v6'); a.e('s_mul_i32 s44, s2, 160'); a.e('v_add_u32 v46, s44, v46'); a.e('v_lshlrev_b32 v46, 3, v46')
    a.e('s_mov_b32 s41, 0')
    a.lab(name + '_sloop')
    for par in range(2):
        hb = HB[par]
        get_mem(a, hb)
        a.e('s_waitcnt lgkmcnt(0)'); a.e('s_barrier')
        for r in range(28): a.e('v_mov_b32 v%d, 0' % (8+r))
        for half in range(2):
            for k in range(7): a.e('ds_read_b128 v[%d:%d], v40 offset:%d' % (60+4*k, 63+4*k, hb + (half*7+k)*64))
            for k in range(7):
                a.e('s_waitcnt lgkmcnt(%d)' % (6-k))
                for t in range(7):
                    a.e('v_mfma_f32_16x16x32_bf16 v[%d:%d], %s, v[%d:%d], v[%d:%d]' % (8+4*t, 11+4*t, wfrag(t*14+half*7+k, 64), 60+4*k, 63+4*k, 8+4*t, 11+4*t))
        a.e('s_nop 7')
        for t in range(7):
            a.e('v_cvt_pk_bf16_f32 v%d, v%d, v%d' % (8+4*t, 8+4*t, 9+4*t)); a.e('v_cvt_pk_bf16_f32 v%d, v%d, v%d' % (9+4*t, 10+4*t, 11+4*t))
        for q in range(4):
            if q < 3:
                a.e('v_mov_b32 v%d, v%d' % (10+8*q, 12+8*q)); a.e('v_mov_b32 v%d, v%d' % (11+8*q, 13+8*q))
            else:
                a.e('v_mov_b32 v%d, 0' % (10+8*q)); a.e('v_mov_b32 v%d, 0' % (11+8*q))
        for r in range(12): a.e('v_mov_b32 v%d, 0' % (76+r))
        a.e('v_add_u32 v41, %d, v41' % hb)
        for kt in range(3):
            for q in range(4):
                r = 60 + 4*q
                a.e('ds_read_b64 v[%d:%d], v41 offset:%d' % (r, r+1, kt*16*HS + q*64))
                a.e('ds_read_b64 v[%d:%d], v41 offset:%d' % (r+2, r+3, kt*16*HS + q*64 + 32))
            a.e('s_waitcnt lgkmcnt(0)')
            for q in range(4):
                r = 60 + 4*q
                a.e('v_mfma_f32_16x16x32_bf16 v[%d:%d], v[%d:%d], v[%d:%d], v[%d:%d]' % (76+4*kt, 79+4*kt, r, r+3, 8+8*q, 11+8*q, 76+4*kt, 79+4*kt))
        a.e('v_subrev_u32 v41, %d, v41' % hb); a.e('s_nop 7'); a.e('s_nop 3')
        for kt in range(3):
            for r in range(4): a.e('ds_write_b32 v42, v%d offset:%d' % (76+4*kt+r, kt*1024 + r*64))
        a.e('s_waitcnt lgkmcnt(0)'); a.e('s_barrier')
        sk = a.uniq('sk')
        a.e('s_cmp_lg_u32 s43, 0'); a.e('s_cbranch_scc1 %s' % sk)
        dst = [8, 18, 60, 70]
        for w in range(4):
            for k in range(10): a.e('ds_read_b32 v%d, v45 offset:%d' % (dst[w]+k, w*3072 + k*64))
        a.e('s_waitcnt lgkmcnt(0)')
        for k in range(10):
            a.e('v_add_f32 v%d, v%d, v%d' % (8+k, 8+k, 18+k)); a.e('v_add_f32 v%d, v%d, v%d' % (60+k, 60+k, 70+k)); a.e('v_add_f32 v%d, v%d, v%d' % (8+k, 8+k, 60+k))
        a.e('v_max_f32 v20, v8, v9')
        for k in range(2, 10): a.e('v_max_f32 v20, v20, v%d' % (8+k))
        def red(op):
            for m in (8, 16):
                a.e('v_xor_b32 v21, %d, v1' % m); a.e('v_lshlrev_b32 v21, 2, v21'); a.e('ds_bpermute_b32 v22, v21, v20'); a.e('s_waitcnt lgkmcnt(0)'); a.e('%s v20, v20, v22' % op)
        red('v_max_f32')
        for k in range(10):
            a.e('v_sub_f32 v%d, v%d, v20' % (8+k, 8+k)); a.e('v_mul_f32 v%d, 0x3fb8aa3b, v%d' % (8+k, 8+k)); a.e('v_exp_f32 v%d, v%d' % (8+k, 8+k))
        a.e('s_nop 0'); a.e('v_add_f32 v20, v8, v9')
        for k in range(2, 10): a.e('v_add_f32 v20, v20, v%d' % (8+k))
        red('v_add_f32')
        a.e('v_rcp_f32 v20, v20'); a.e('s_nop 0')
        for k in range(10): a.e('v_mul_f32 v%d, v%d, v20' % (8+k, 8+k))
        for k in range(5):
            a.e('v_cvt_pk_bf16_f32 v%d, v%d, v%d' % (24+2*k, 8+2*k, 9+2*k)); a.e('v_mov_b32 v%d, 1' % (25+2*k))
        a.e('s_lshl_b32 s42, s41, 15')
        a.e('s_mov_b32 exec_lo, -1'); a.e('s_mov_b32 exec_hi, 0')
        for k in range(5): a.e('buffer_store_dwordx2 v[%d:%d], v46, s[16:19], s42 offen offset:%d sc1' % (24+2*k, 25+2*k, k*8))
        a.e('s_mov_b64 exec, -1')
        a.lab(sk)
        a.e('s_waitcnt vmcnt(0)')
        xs_store(par ^ 1)
        a.e('s_add_u32 s46, s46, %d' % (32*896)); xs_load()
        a.e('s_add_u32 s41, s41, 1')
    a.e('s_cmp_lt_u32 s41, 64'); a.e('s_cbranch_scc1 %s_sloop' % name)
    a.e('s_branch %s_done' % name)
    a.lab(name + '_val')
    MB = 0; RS = 1296; RT = 16*HS; PT = RT + 16*RS
    a.srd(8, D_WS, WVT, 16*448*896); a.srd(20, D_WS, VOT, 7168*4096); a.srd(28, D_WS, YB, 64*16*448*16)
    a.e('s_sub_u32 s47, s2, 16')
    a.e('s_mul_i32 s44, s43, %d' % (4*448*896)); a.e('s_mul_i32 s45, s47, %d' % (16*896)); a.e('s_add_u32 s44, s44, s45')
    a.e('v_mul_u32_u24 v6, 896, v3'); a.e('v_lshl_add_u32 v6, v4, 4, v6'); a.e('v_add_u32 v6, s44, v6')
    for hh in range(4):
        for ks in range(14):
            a.e('buffer_load_dwordx4 %s, v6, s[8:11], 0 offen offset:%d' % (wfrag(hh*14+ks, 64), ks*64))
        a.e('v_add_u32 v6, %d, v6' % (448*896))
    for i in range(4):
        a.e('v_add_u32 v6, %d, v0' % (256*i)); a.e('v_lshrrev_b32 v7, 6, v6'); a.e('v_bfe_u32 v8, v6, 2, 4'); a.e('v_and_b32 v9, 3, v6')
        a.e('v_mul_u32_u24 v10, 448, v7'); a.e('v_add_u32 v10, v10, v8'); a.e('s_lshl_b32 s44, s47, 4'); a.e('v_add_u32 v10, s44, v10')
        a.e('v_lshlrev_b32 v10, 12, v10'); a.e('v_lshl_add_u32 v%d, v9, 4, v10' % (36+i))
        a.e('v_mul_u32_u24 v10, %d, v8' % RS); a.e('v_mul_u32_u24 v11, 80, v7'); a.e('v_add_u32 v10, v10, v11'); a.e('v_lshl_add_u32 v10, v9, 4, v10'); a.e('v_add_u32 v%d, %d, v10' % (40+i, RT))
    def vo_load():
        for i in range(4): a.e('buffer_load_dwordx4 v[%d:%d], v%d, s[20:23], s46 offen' % (88+4*i, 91+4*i, 36+i))
    a.e('s_mov_b32 s46, 0'); vo_load()
    for i in range(5):
        a.e('v_add_u32 v6, %d, v0' % (256*i)); a.e('v_lshlrev_b32 v6, 1, v6')
        a.e('s_mov_b32 s44, 0x%x' % ((2**32 + 19)//20)); a.e('v_mul_hi_u32 v7, v6, s44'); a.e('v_mul_u32_u24 v8, 20, v7'); a.e('v_sub_u32 v8, v6, v8')
        a.e('v_and_b32 v9, 7, v7'); a.e('v_lshrrev_b32 v7, 3, v7')
        a.e('v_mul_u32_u24 v9, %d, v9' % RS); a.e('v_mul_u32_u24 v7, 80, v7'); a.e('v_add_u32 v9, v9, v7'); a.e('v_lshl_add_u32 v9, v8, 2, v9'); a.e('v_add_u32 v%d, %d, v9' % (44+i, PT))
    a.e('v_lshlrev_b32 v49, 4, v0')
    a.e('v_mul_u32_u24 v30, %d, v3' % HS); a.e('v_lshl_add_u32 v30, v4, 4, v30')
    a.e('v_mul_u32_u24 v31, %d, v3' % RS); a.e('v_lshl_add_u32 v31, v4, 4, v31')
    a.e('v_mul_u32_u24 v32, %d, v3' % RS); a.e('v_lshl_add_u32 v32, v4, 3, v32'); a.e('v_mul_u32_u24 v6, 320, v2'); a.e('v_add_u32 v32, v32, v6'); a.e('v_add_u32 v32, %d, v32' % (RT + 64))
    a.e('v_mul_u32_u24 v33, %d, v2' % (4*448)); a.e('v_add_u32 v33, v33, v3'); a.e('s_lshl_b32 s44, s47, 4'); a.e('v_add_u32 v33, s44, v33'); a.e('v_lshlrev_b32 v33, 4, v33'); a.e('v_lshl_add_u32 v33, v4, 3, v33')
    a.e('v_mul_u32_u24 v34, 224, v3'); a.e('v_lshl_add_u32 v34, v4, 1, v34'); a.e('s_lshl_b32 s44, s47, 3'); a.e('v_add_u32 v34, s44, v34'); a.e('v_lshlrev_b32 v34, 3, v34')
    a.e('s_mov_b32 s41, 0')
    a.lab(name + '_vloop')
    a.e('s_waitcnt vmcnt(0)')
    for i in range(4): a.e('ds_write_b128 v%d, v[%d:%d]' % (40+i, 88+4*i, 91+4*i))
    a.e('s_add_u32 s46, s46, 64'); a.e('s_min_u32 s46, s46, %d' % (63*64)); vo_load()
    get_mem(a, MB)
    a.e('s_waitcnt lgkmcnt(0)'); a.e('s_barrier')
    for r in range(16): a.e('v_mov_b32 v%d, 0' % (8+r))
    for half in range(2):
        for k in range(7): a.e('ds_read_b128 v[%d:%d], v30 offset:%d' % (60+4*k, 63+4*k, MB + (half*7+k)*64))
        for k in range(7):
            a.e('s_waitcnt lgkmcnt(%d)' % (6-k))
            for hh in range(4):
                a.e('v_mfma_f32_16x16x32_bf16 v[%d:%d], v[%d:%d], %s, v[%d:%d]' % (8+4*hh, 11+4*hh, 60+4*k, 63+4*k, wfrag(hh*14+half*7+k, 64), 8+4*hh, 11+4*hh))
    a.e('s_nop 7')
    for hh in range(4):
        a.e('v_cvt_pk_bf16_f32 v%d, v%d, v%d' % (8+4*hh, 8+4*hh, 9+4*hh)); a.e('v_cvt_pk_bf16_f32 v%d, v%d, v%d' % (9+4*hh, 10+4*hh, 11+4*hh))
    a.e('s_mul_i32 s44, s41, %d' % (16*448*16))
    a.e('s_mov_b32 exec_lo, -1'); a.e('s_mov_b32 exec_hi, 0')
    for hh in range(4):
        a.e('ds_write_b64 v32, v[%d:%d] offset:%d' % (8+4*hh, 9+4*hh, hh*80))
        a.e('buffer_store_dwordx2 v[%d:%d], v33, s[28:31], s44 offen offset:%d' % (8+4*hh, 9+4*hh, 0) if hh == 0 else
            'v_add_u32 v35, %d, v33\nbuffer_store_dwordx2 v[%d:%d], v35, s[28:31], s44 offen' % (hh*448*16, 8+4*hh, 9+4*hh))
    a.e('s_mov_b64 exec, -1')
    a.e('s_lshl_b32 s42, s41, 15')
    poll(a, 5, 49, 4096, 60, 16, 42, 4, [1, 3])
    for i in range(5):
        a.e('ds_write_b32 v%d, v%d' % (44+i, 60+4*i)); a.e('ds_write_b32 v%d, v%d offset:4' % (44+i, 62+4*i))
    a.e('s_waitcnt lgkmcnt(0)'); a.e('s_barrier')
    sk = a.uniq('vs')
    a.e('s_cmp_lg_u32 s43, 0'); a.e('s_cbranch_scc1 %s' % sk)
    for r in range(4): a.e('v_mov_b32 v%d, 0' % (8+r))
    for blk in range(7):
        nk = 3 if blk < 6 else 2
        for k in range(nk):
            a.e('ds_read_b128 v[%d:%d], v31 offset:%d' % (60+8*k, 63+8*k, RT + (blk*3+k)*64))
            a.e('ds_read_b128 v[%d:%d], v31 offset:%d' % (64+8*k, 67+8*k, PT + (blk*3+k)*64))
        a.e('s_waitcnt lgkmcnt(0)')
        for k in range(nk):
            a.e('v_mfma_f32_16x16x32_bf16 v[8:11], v[%d:%d], v[%d:%d], v[8:11]' % (60+8*k, 63+8*k, 64+8*k, 67+8*k))
    a.e('s_nop 7'); a.e('s_nop 3')
    a.e('v_cvt_pk_bf16_f32 v12, v8, v9'); a.e('v_mov_b32 v13, 1'); a.e('v_cvt_pk_bf16_f32 v14, v10, v11'); a.e('v_mov_b32 v15, 1')
    a.e('s_add_u32 s42, s41, 1'); a.e('s_lshl_b32 s42, s42, 14')
    a.e('v_cmp_gt_u32 vcc, 8, v3'); a.e('s_and_b64 exec, exec, vcc')
    a.e('buffer_store_dwordx4 v[12:15], v34, s[12:15], s42 offen sc1')
    a.e('s_mov_b64 exec, -1')
    a.lab(sk)
    a.e('s_barrier')
    a.e('s_add_u32 s41, s41, 1'); a.e('s_cmp_lt_u32 s41, 64'); a.e('s_cbranch_scc1 %s_vloop' % name)
    a.lab(name + '_done')
    a.e('s_endpgm')
    g = extra()
    a.lab(name + '_done2')
    a.end(name, 256, 44 + g, 25*4096, na=256)


def final(a, name):
    a.begin(name)
    a.e('s_cmp_ge_u32 s2, 256'); a.e('s_cbranch_scc1 %s_done' % name)
    a.e('s_lshr_b32 s41, s2, 2'); a.e('s_and_b32 s47, s2, 3')
    a.srd(8, D_WS, XN, 2048*896); a.srd(12, D_WS, MBMEM, MBP - MBMEM); a.srd(24, A_MEM0)
    a.srd(16, D_WS, U, 2048*14336); a.srd(20, D_WS, VOT, 7168*4096); a.srd(28, D_WS, YB, 64*16*448*16)
    a.e('v_and_b32 v1, 63, v0'); a.e('v_lshrrev_b32 v2, 6, v0'); a.e('v_and_b32 v3, 15, v0'); a.e('v_bfe_u32 v4, v0, 4, 2')
    a.e('v_lshlrev_b32 v5, 4, v0')
    for i in range(4): a.e('v_mov_b32 v%d, 0' % (8+i))
    for i in range(3): a.e('ds_write_b128 v5, v[8:11] offset:%d' % (32*HS + i*4096))
    a.e('s_waitcnt lgkmcnt(0)'); a.e('s_barrier')
    a.e('s_mul_i32 s46, s41, %d' % (32*896))
    for i in range(7):
        a.e('v_add_u32 v6, %d, v0' % (256*i)); a.e('s_mov_b32 s44, 0x%x' % ((2**32 + 55)//56)); a.e('v_mul_hi_u32 v7, v6, s44')
        a.e('v_mul_u32_u24 v8, 56, v7'); a.e('v_sub_u32 v8, v6, v8'); a.e('v_mul_u32_u24 v7, %d, v7' % HS); a.e('v_lshl_add_u32 v9, v8, 4, v7')
        bop(a, 'buffer_load_dwordx4', 'v[12:15]', 5, 8, 46, i*4096); a.e('s_waitcnt vmcnt(0)'); a.e('ds_write_b128 v9, v[12:15]')
    a.e('v_lshlrev_b32 v50, 3, v0'); a.e('v_lshlrev_b32 v51, 2, v0'); a.e('s_lshl_b32 s42, s41, 14')
    for i in range(7):
        a.e('v_add_u32 v6, %d, v0' % (256*i)); a.e('s_mov_b32 s44, 0x%x' % ((2**32 + 223)//224)); a.e('v_mul_hi_u32 v7, v6, s44')
        a.e('v_mul_u32_u24 v8, 224, v7'); a.e('v_sub_u32 v8, v6, v8'); a.e('v_mul_u32_u24 v7, %d, v7' % HS); a.e('v_lshl_add_u32 v9, v8, 2, v7')
        L = a.uniq('fm')
        a.e('s_cmp_lg_u32 s41, 0'); a.e('s_cbranch_scc1 %s_a' % L)
        bop(a, 'buffer_load_dword', 'v12', 51, 24, None, i*1024); a.e('s_branch %s_b' % L)
        a.lab(L + '_a'); bop(a, 'buffer_load_dword', 'v12', 50, 12, 42, i*2048); a.lab(L + '_b')
        a.e('s_waitcnt vmcnt(0)'); a.e('ds_write_b32 v9, v12 offset:%d' % (32*HS))
    a.e('s_waitcnt lgkmcnt(0)'); a.e('s_barrier')
    a.e('v_mul_u32_u24 v40, %d, v3' % HS); a.e('v_lshl_add_u32 v40, v4, 4, v40')
    a.e('s_lshl_b32 s44, s41, 5'); a.e('v_add_u32 v41, s44, v3'); a.e('s_mov_b32 s45, 14336'); a.e('v_mul_lo_u32 v41, v41, s45'); a.e('v_lshl_add_u32 v41, v4, 4, v41')
    a.e('v_mul_u32_u24 v6, 3584, v2'); a.e('v_add_u32 v41, v41, v6')
    a.e('s_mul_i32 s44, s47, 112'); a.e('v_mul_u32_u24 v42, 1792, v2'); a.e('v_add_u32 v42, v42, v3'); a.e('v_add_u32 v42, s44, v42'); a.e('v_mov_b32 v43, v42')
    a.e('v_lshlrev_b32 v42, 12, v42'); a.e('v_lshl_add_u32 v42, v4, 3, v42'); a.e('s_lshl_b32 s44, s41, 6'); a.e('v_add_u32 v42, s44, v42')
    a.e('v_lshlrev_b32 v43, 4, v43'); a.e('v_lshl_add_u32 v43, v4, 3, v43'); a.e('s_mul_i32 s44, s41, 114688'); a.e('v_add_u32 v43, s44, v43')
    a.e('v_cmp_lt_u32 vcc, 1, v4'); a.e('v_mov_b32 v6, 0x7f000000'); a.e('s_nop 1'); a.e('v_cndmask_b32 v44, 0, v6, vcc'); a.e('v_add_u32 v43, v43, v44')
    OA = 128
    for r in range(56): a.e('v_mov_b32 v%d, 0' % (OA + r))
    a.e('v_mov_b32 v118, 0xff800000')
    for hh in range(4):
        for r in range(24): a.e('v_mov_b32 v%d, 0' % (8 + r))
        for ks in range(14):
            for qt in range(2):
                a.e('s_mov_b32 s45, %d' % (qt*16*14336 + hh*896))
                a.e('buffer_load_dwordx4 v[%d:%d], v41, s[16:19], s45 offen offset:%d' % (60+4*qt, 63+4*qt, ks*64))
            for kt in range(3): a.e('ds_read_b128 v[%d:%d], v40 offset:%d' % (68+4*kt, 71+4*kt, kt*16*HS + ks*64))
            a.e('s_waitcnt vmcnt(0) lgkmcnt(0)')
            for kt in range(3):
                for qt in range(2):
                    c = 8 + (kt*2+qt)*4
                    a.e('v_mfma_f32_16x16x32_bf16 v[%d:%d], v[%d:%d], v[%d:%d], v[%d:%d]' % (c, c+3, 68+4*kt, 71+4*kt, 60+4*qt, 63+4*qt, c, c+3))
        a.e('s_nop 7')
        for qt in range(2):
            for kt in range(3):
                for r in range(4):
                    c = 8 + (kt*2+qt)*4 + r
                    if kt < 2:
                        a.e('v_lshl_add_u32 v6, v4, 2, %d' % (16*kt + r)); a.e('v_add_u32 v7, %d, v3' % (16*qt)); a.e('v_cmp_le_u32 vcc, v6, v7')
                    else:
                        a.e('v_cmp_gt_u32 vcc, 2, v4')
                    a.e('s_nop 1'); a.e('v_cndmask_b32 v%d, v118, v%d, vcc' % (c, c))
            regs = [8 + (kt*2+qt)*4 + r for kt in range(3) for r in range(4)]
            a.e('v_max_f32 v32, v%d, v%d' % (regs[0], regs[1]))
            for x in regs[2:]: a.e('v_max_f32 v32, v32, v%d' % x)
            def red(op):
                for m in (16, 32):
                    a.e('v_xor_b32 v33, %d, v1' % m); a.e('v_lshlrev_b32 v33, 2, v33'); a.e('ds_bpermute_b32 v34, v33, v32'); a.e('s_waitcnt lgkmcnt(0)'); a.e('%s v32, v32, v34' % op)
            red('v_max_f32')
            for x in regs:
                a.e('v_sub_f32 v%d, v%d, v32' % (x, x)); a.e('v_mul_f32 v%d, 0x3fb8aa3b, v%d' % (x, x)); a.e('v_exp_f32 v%d, v%d' % (x, x))
            a.e('s_nop 0'); a.e('v_add_f32 v32, v%d, v%d' % (regs[0], regs[1]))
            for x in regs[2:]: a.e('v_add_f32 v32, v32, v%d' % x)
            red('v_add_f32')
            a.e('v_rcp_f32 v32, v32'); a.e('s_nop 0')
            for x in regs: a.e('v_mul_f32 v%d, v%d, v32' % (x, x))
            pb = 80 + 8*qt
            for kt in range(3):
                c = 8 + (kt*2+qt)*4
                a.e('v_cvt_pk_bf16_f32 v%d, v%d, v%d' % (pb+2*kt, c, c+1)); a.e('v_cvt_pk_bf16_f32 v%d, v%d, v%d' % (pb+2*kt+1, c+2, c+3))
            a.e('v_mov_b32 v%d, 0' % (pb+6)); a.e('v_mov_b32 v%d, 0' % (pb+7))
        a.e('v_mov_b32 v102, 0'); a.e('v_mov_b32 v103, 0')
        for jt in range(7):
            a.e('s_mov_b32 s45, %d' % ((hh*448 + jt*16)*4096))
            a.e('buffer_load_dwordx2 v[96:97], v42, s[20:23], s45 offen'); a.e('buffer_load_dwordx2 v[98:99], v42, s[20:23], s45 offen offset:32')
            a.e('s_mov_b32 s45, %d' % ((hh*448 + jt*16)*16))
            a.e('buffer_load_dwordx2 v[100:101], v43, s[28:31], s45 offen')
            a.e('s_waitcnt vmcnt(0)')
            for qt in range(2):
                c = OA + (jt*2+qt)*4; pb = 80 + 8*qt
                a.e('v_mfma_f32_16x16x32_bf16 v[%d:%d], v[96:99], v[%d:%d], v[%d:%d]' % (c, c+3, pb, pb+3, c, c+3))
                a.e('v_mfma_f32_16x16x32_bf16 v[%d:%d], v[100:103], v[%d:%d], v[%d:%d]' % (c, c+3, pb+4, pb+7, c, c+3))
    a.e('s_nop 7'); a.e('s_nop 3'); a.e('s_barrier')
    QS = 464
    a.e('v_mul_u32_u24 v5, %d, v2' % (32*QS)); a.e('v_mul_u32_u24 v6, %d, v3' % QS); a.e('v_add_u32 v5, v5, v6'); a.e('v_lshl_add_u32 v5, v4, 4, v5')
    for jt in range(7):
        for qt in range(2):
            c = OA + (jt*2+qt)*4
            a.e('ds_write_b128 v5, v[%d:%d] offset:%d' % (c, c+3, qt*16*QS + jt*64))
    a.e('s_waitcnt lgkmcnt(0)'); a.e('s_barrier')
    a.srd(8, A_X); a.srd(12, D_WS, BO, 2048*896); a.srd(16, D_OUT)
    for it in range(4):
        a.e('v_add_u32 v6, %d, v0' % (256*it)); a.e('s_mov_b32 s44, 0x%x' % ((2**32 + 27)//28)); a.e('v_mul_hi_u32 v7, v6, s44')
        a.e('v_mul_u32_u24 v8, 28, v7'); a.e('v_sub_u32 v8, v6, v8')
        a.e('v_cmp_gt_u32 vcc, 896, v6'); a.e('s_mov_b64 s[36:37], exec'); a.e('s_and_b64 exec, exec, vcc')
        a.e('v_mul_u32_u24 v9, %d, v7' % QS); a.e('v_lshl_add_u32 v9, v8, 4, v9')
        for w in range(4): a.e('ds_read_b128 v[%d:%d], v9 offset:%d' % (12+4*w, 15+4*w, w*32*QS))
        a.e('s_lshl_b32 s44, s41, 5'); a.e('v_add_u32 v10, s44, v7'); a.e('v_mul_u32_u24 v10, 896, v10'); a.e('v_lshl_add_u32 v10, v8, 3, v10'); a.e('s_mul_i32 s44, s47, 224'); a.e('v_add_u32 v10, s44, v10')
        a.e('buffer_load_dwordx2 v[30:31], v10, s[8:11], 0 offen'); a.e('buffer_load_dwordx2 v[32:33], v10, s[12:15], 0 offen')
        a.e('s_waitcnt vmcnt(0) lgkmcnt(0)')
        for r in range(4):
            a.e('v_add_f32 v%d, v%d, v%d' % (12+r, 12+r, 16+r)); a.e('v_add_f32 v%d, v%d, v%d' % (20+r, 20+r, 24+r)); a.e('v_add_f32 v%d, v%d, v%d' % (12+r, 12+r, 20+r))
        def unpack(dst, src):
            for r in range(4):
                if r & 1: a.e('v_and_b32 v%d, 0xffff0000, v%d' % (dst+r, src+(r>>1)))
                else: a.e('v_lshlrev_b32 v%d, 16, v%d' % (dst+r, src+(r>>1)))
        def rnd():
            a.e('v_cvt_pk_bf16_f32 v34, v12, v13'); a.e('v_cvt_pk_bf16_f32 v35, v14, v15')
        rnd(); unpack(12, 34); unpack(16, 30)
        for r in range(4): a.e('v_add_f32 v%d, v%d, v%d' % (12+r, 12+r, 16+r))
        rnd(); unpack(12, 34); unpack(16, 32)
        for r in range(4): a.e('v_add_f32 v%d, v%d, v%d' % (12+r, 12+r, 16+r))
        rnd()
        a.e('buffer_store_dwordx2 v[34:35], v10, s[16:19], 0 offen')
        a.e('s_mov_b64 exec, s[36:37]')
    a.lab(name + '_done')
    a.end(name, 184, 256, 4*32*464)
```

```python
KNAME = "parallel_sum__memory_aug_recurrent_mem_tr__dense_activation_gelu__prompt_kernel"
A_X, A_MEM0, A_WQ, A_WK, A_WV, A_WO, A_SEG, B_X, B_W1, B_B1, B_W2, B_B2, D_OUT, D_DBG, D_WS = range(15)
SIZES = {A_X: 2048*448*2, A_MEM0: 8*448*2, A_WQ: 448*4096*2, A_WK: 448*4096*2, A_WV: 448*4096*2, A_WO: 448*4096*2,
         B_W1: 448*1792*2, B_B1: 1792*2, B_W2: 448*1792*2, B_B2: 448*2, D_OUT: 2048*448*2, D_DBG: 256, D_WS: 268435456}
XN = 0x0; AT = 0x200000; WVT = 0x900000; WOT = 0x1000000; W1T = 0x1400000; W2T = 0x1600000
H1 = 0x1800000; BO = 0x2000000; U = 0x2200000; VOT = 0x4000000
MBMEM = 0x6000000; MBMEM_SLOT = 0x4000; MBP = 0x6200000; MBP_SLOT = 0x8000; YB = 0x6800000
MB_END = 0x6400000

class Asm:
    def __init__(self):
        self.l = []; self.k = []; self.launch = []; self.n = 0
    def e(self, s):
        for x in s.strip('\n').split('\n'):
            self.l.append('    ' + x.strip())
    def lab(self, s): self.l.append(s + ':')
    def uniq(self, p):
        self.n += 1; return '%s_%d' % (p, self.n)
    def begin(self, name):
        self.l += ['.text', '.globl ' + name, '.p2align 8', '.type %s,@function' % name, name + ':']
    def end(self, name, nv, grid, lds, na=0, block=256, ns=102):
        self.e('s_endpgm')
        acc = (nv + 3) // 4 * 4
        self.k.append(""".section .rodata,"a"
.p2align 6
.amdhsa_kernel %s
  .amdhsa_next_free_vgpr %d
  .amdhsa_next_free_sgpr %d
  .amdhsa_accum_offset %d
  .amdhsa_group_segment_fixed_size 0
  .amdhsa_kernarg_size 120
  .amdhsa_user_sgpr_count 2
  .amdhsa_user_sgpr_kernarg_segment_ptr 1
  .amdhsa_system_sgpr_workgroup_id_x 1
.end_amdhsa_kernel""" % (name, acc + na if na else nv, ns, acc))
        self.launch.append('; @launch kernel=%s grid=(%d,1,1) block=(%d,1,1) lds=%d' % (name, grid, block, lds))
    def srd(self, s, slot, off=0, size=None, tmp=None):
        if size is None: size = SIZES[slot] - off
        self.e('s_load_dwordx2 s[%d:%d], s[0:1], %d' % (s, s+1, slot*8))
        self.e('s_waitcnt lgkmcnt(0)')
        if off:
            self.e('s_add_u32 s%d, s%d, 0x%x' % (s, s, off))
            self.e('s_addc_u32 s%d, s%d, 0' % (s+1, s+1))
        self.e('s_and_b32 s%d, s%d, 0xffff' % (s+1, s+1))
        self.e('s_mov_b32 s%d, 0x%x' % (s+2, size))
        self.e('s_mov_b32 s%d, 0x00020000' % (s+3))
    def text(self, header):
        return header + '\n'.join(self.launch) + '\n.amdgcn_target "amdgcn-amd-amdhsa--gfx950"\n' + '\n'.join(self.l) + '\n' + '\n'.join(self.k) + '\n'

def divmod_s(a, sq, sr, ssrc, d, stmp):
    magic = (2**32 + d - 1) // d
    a.e('s_mul_hi_u32 s%d, s%d, 0x%x' % (sq, ssrc, magic))
    a.e('s_mul_i32 s%d, s%d, %d' % (stmp, sq, d))
    a.e('s_sub_u32 s%d, s%d, s%d' % (sr, ssrc, stmp))

def gemm(a, name, A, B, O, M, N, K, batch, TM, TN, epi=None, bias=None, embed=None):
    tm, tn = M // TM, N // TN
    grid = tm * tn * batch
    if embed is None:
        a.begin(name)
    else:
        a.lab(name); a.e('s_sub_u32 s2, s2, %d' % embed[0])
    a.e('s_cmp_ge_u32 s2, %d' % grid); a.e('s_cbranch_scc1 %s' % (name + '_done' if embed is None else embed[1]))
    divmod_s(a, 20, 23, 2, tm * tn, 24)
    divmod_s(a, 22, 21, 23, tm, 24)
    a.srd(8, A[0], A[1]); a.srd(12, B[0], B[1]); a.srd(16, O[0], O[1])
    if bias is not None: a.srd(28, bias[0], 0)
    LS = 144
    nA, nB = TM * 8 // 256, TN * 8 // 256
    bufsz = (TM + TN) * LS
    a.e('v_lshrrev_b32 v4, 3, v0')
    a.e('v_and_b32 v5, 7, v0')
    a.e('v_lshlrev_b32 v5, 4, v5')
    a.e('s_mul_i32 s24, s21, %d' % (TM * A[2])); a.e('s_mul_i32 s25, s20, %d' % A[3]); a.e('s_add_u32 s24, s24, s25')
    a.e('s_mov_b32 s26, %d' % A[2]); a.e('v_mul_lo_u32 v1, v4, s26'); a.e('v_add_u32 v1, v1, v5'); a.e('v_add_u32 v1, s24, v1')
    a.e('s_mul_i32 s24, s22, %d' % (TN * B[2])); a.e('s_mul_i32 s25, s20, %d' % B[3]); a.e('s_add_u32 s24, s24, s25')
    a.e('s_mov_b32 s26, %d' % B[2]); a.e('v_mul_lo_u32 v2, v4, s26'); a.e('v_add_u32 v2, v2, v5'); a.e('v_add_u32 v2, s24, v2')
    a.e('v_mul_u32_u24 v3, %d, v4' % LS); a.e('v_add_u32 v3, v3, v5')
    WM, WN = TM // 2, TN // 2
    a.e('v_lshrrev_b32 v6, 6, v0'); a.e('v_and_b32 v7, 1, v6'); a.e('v_lshrrev_b32 v6, 1, v6')
    a.e('v_and_b32 v8, 31, v0'); a.e('v_bfe_u32 v9, v0, 5, 1'); a.e('v_lshlrev_b32 v10, 4, v9')
    a.e('v_mul_u32_u24 v11, %d, v7' % WM); a.e('v_add_u32 v11, v11, v8'); a.e('v_mul_u32_u24 v11, %d, v11' % LS); a.e('v_add_u32 v11, v11, v10')
    a.e('v_mul_u32_u24 v12, %d, v6' % WN); a.e('v_add_u32 v12, v12, v8'); a.e('v_mul_u32_u24 v12, %d, v12' % LS); a.e('v_add_u32 v12, v12, v10')
    a.e('v_add_u32 v12, %d, v12' % (TM * LS))
    ti, tj = WM // 32, WN // 32
    a.e('v_add_u32 v15, %d, v3' % bufsz); a.e('v_add_u32 v16, %d, v11' % bufsz); a.e('v_add_u32 v17, %d, v12' % bufsz)
    ACC = 20; nacc = ti * tj * 16
    FA = ACC + nacc; FB = FA + 4 * ti; ST = FB + 4 * tj
    nv = ST + 4 * (nA + nB)
    for r in range(nacc): a.e('v_mov_b32 v%d, 0' % (ACC + r))
    def gload(kc):
        a.e('s_mov_b32 s27, %d' % (kc * 128))
        for i in range(nA):
            a.e('v_add_u32 v13, %d, v1' % (i * 32 * A[2])) if i else None
            a.e('buffer_load_dwordx4 v[%d:%d], v%d, s[8:11], s27 offen' % (ST + 4*i, ST + 4*i + 3, 13 if i else 1))
        for i in range(nB):
            a.e('v_add_u32 v14, %d, v2' % (i * 32 * B[2])) if i else None
            a.e('buffer_load_dwordx4 v[%d:%d], v%d, s[12:15], s27 offen' % (ST + 4*(nA+i), ST + 4*(nA+i) + 3, 14 if i else 2))
    def lstore(buf):
        for i in range(nA):
            a.e('ds_write_b128 v%d, v[%d:%d] offset:%d' % (15 if buf else 3, ST + 4*i, ST + 4*i + 3, i*32*LS))
        for i in range(nB):
            a.e('ds_write_b128 v%d, v[%d:%d] offset:%d' % (15 if buf else 3, ST + 4*(nA+i), ST + 4*(nA+i) + 3, TM*LS + i*32*LS))
    nK = K // 64
    gload(0); a.e('s_waitcnt vmcnt(0)'); lstore(0); a.e('s_waitcnt lgkmcnt(0)'); a.e('s_barrier')
    for kc in range(nK):
        buf = kc & 1
        if kc + 1 < nK: gload(kc + 1)
        for ks in range(4):
            for i in range(ti): a.e('ds_read_b128 v[%d:%d], v%d offset:%d' % (FA+4*i, FA+4*i+3, 16 if buf else 11, i*32*LS + ks*32))
            for j in range(tj): a.e('ds_read_b128 v[%d:%d], v%d offset:%d' % (FB+4*j, FB+4*j+3, 17 if buf else 12, j*32*LS + ks*32))
            a.e('s_waitcnt lgkmcnt(0)')
            for i in range(ti):
                for j in range(tj):
                    c = ACC + (i*tj + j) * 16
                    a.e('v_mfma_f32_32x32x16_bf16 v[%d:%d], v[%d:%d], v[%d:%d], v[%d:%d]' % (c, c+15, FA+4*i, FA+4*i+3, FB+4*j, FB+4*j+3, c, c+15))
        if kc + 1 < nK:
            a.e('s_waitcnt vmcnt(0)'); lstore(buf ^ 1); a.e('s_waitcnt lgkmcnt(0)'); a.e('s_barrier')
    a.e('s_nop 15'); a.e('s_nop 7')
    a.e('s_mul_i32 s24, s22, %d' % TN); a.e('v_mul_u32_u24 v1, %d, v6' % WN); a.e('v_add_u32 v1, v1, v8'); a.e('v_add_u32 v1, s24, v1')
    a.e('s_mov_b32 s26, %d' % O[2]); a.e('v_mul_lo_u32 v1, v1, s26')
    a.e('s_mul_i32 s24, s21, %d' % TM); a.e('v_mul_u32_u24 v2, %d, v7' % WM); a.e('v_lshl_add_u32 v2, v9, 2, v2'); a.e('v_add_u32 v2, s24, v2')
    a.e('v_lshlrev_b32 v2, 1, v2')
    a.e('s_mul_i32 s25, s20, %d' % O[3]); a.e('v_add_u32 v1, v1, v2'); a.e('v_add_u32 v1, s25, v1')
    T = FA
    for i in range(ti):
        for j in range(tj):
            c = ACC + (i*tj + j) * 16
            for g in range(4):
                r = c + 4*g
                moff = (i*32 + 8*g) * 2
                if bias is not None:
                    a.e('buffer_load_dwordx2 v[%d:%d], v2, s[28:31], 0 offen offset:%d' % (T, T+1, moff))
                if epi == 'scale':
                    for q in range(4): a.e('v_mul_f32 v%d, 0x3d800000, v%d' % (r+q, r+q))
                if bias is not None:
                    a.e('v_cvt_pk_bf16_f32 v%d, v%d, v%d' % (T+2, r, r+1)); a.e('v_cvt_pk_bf16_f32 v%d, v%d, v%d' % (T+3, r+2, r+3))
                    a.e('s_waitcnt vmcnt(0)')
                    for q in range(4):
                        src = T + 2 + (q >> 1); bs = T + (q >> 1)
                        if q & 1:
                            a.e('v_and_b32 v%d, 0xffff0000, v%d' % (r+q, src)); a.e('v_and_b32 v%d, 0xffff0000, v%d' % (T+4, bs))
                        else:
                            a.e('v_lshlrev_b32 v%d, 16, v%d' % (r+q, src)); a.e('v_lshlrev_b32 v%d, 16, v%d' % (T+4, bs))
                        a.e('v_add_f32 v%d, v%d, v%d' % (r+q, r+q, T+4))
                    if epi == 'gelu':
                        a.e('v_cvt_pk_bf16_f32 v%d, v%d, v%d' % (T+2, r, r+1)); a.e('v_cvt_pk_bf16_f32 v%d, v%d, v%d' % (T+3, r+2, r+3))
                        for q in range(4):
                            src = T + 2 + (q >> 1)
                            if q & 1: a.e('v_and_b32 v%d, 0xffff0000, v%d' % (r+q, src))
                            else: a.e('v_lshlrev_b32 v%d, 16, v%d' % (r+q, src))
                            a.e('v_mul_f32 v%d, v%d, v%d' % (T+4, r+q, r+q))
                            a.e('v_mul_f32 v%d, 0x3d372713, v%d' % (T+4, T+4))
                            a.e('v_fma_f32 v%d, v%d, v%d, v%d' % (T+4, T+4, r+q, r+q))
                            a.e('v_mul_f32 v%d, 0xc0135761, v%d' % (T+4, T+4))
                            a.e('v_exp_f32 v%d, v%d' % (T+4, T+4)); a.e('s_nop 0')
                            a.e('v_add_f32 v%d, 1.0, v%d' % (T+4, T+4))
                            a.e('v_rcp_f32 v%d, v%d' % (T+4, T+4)); a.e('s_nop 0')
                            a.e('v_mul_f32 v%d, v%d, v%d' % (r+q, r+q, T+4))
                a.e('v_cvt_pk_bf16_f32 v%d, v%d, v%d' % (T+2, r, r+1)); a.e('v_cvt_pk_bf16_f32 v%d, v%d, v%d' % (T+3, r+2, r+3))
                if j:
                    a.e('s_mov_b32 s26, %d' % (j * 32 * O[2]))
                    a.e('buffer_store_dwordx2 v[%d:%d], v1, s[16:19], s26 offen offset:%d' % (T+2, T+3, moff))
                else:
                    a.e('buffer_store_dwordx2 v[%d:%d], v1, s[16:19], 0 offen offset:%d' % (T+2, T+3, moff))
                a.e('s_waitcnt vmcnt(0)')
    a.lab(name + '_done')
    if embed is None: a.end(name, nv, grid, 2 * bufsz)
    else: a.e('s_endpgm')
    return grid
```

```python
from lib import *
from prep import prep
import sys
hdr = open('parallel_sum__memory_aug_recurrent_mem_tr__dense_activation_gelu__prompt.s.ref').read().split('; @launch')[0]
a = Asm()
prep(a, 'prep_kernel')
gemm(a, 'gat_kernel', (A_WQ, 0, 8192, 512), (A_WK, 0, 8192, 512), (D_WS, AT, 896, 448*896), 448, 448, 256, 16, 64, 64, epi='scale')
gemm(a, 'gwv_kernel', (A_WV, 0, 8192, 512), (D_WS, WOT, 512, 448*512), (D_WS, WVT, 896, 448*896), 448, 448, 256, 16, 64, 64)
gemm(a, 'gvo_kernel', (D_WS, XN, 896, 0), (D_WS, WVT, 896, 0), (D_WS, VOT, 4096, 0), 2048, 7168, 448, 1, 128, 128)
gemm(a, 'gf1_kernel', (D_WS, W1T, 896, 0), (D_WS, XN, 896, 0), (D_WS, H1, 3584, 0), 1792, 2048, 448, 1, 128, 128, epi='gelu', bias=(B_B1,))
def extra():
    g = gemm(a, 'x_gf2', (D_WS, W2T, 3584, 0), (D_WS, H1, 3584, 0), (D_WS, BO, 896, 0), 448, 2048, 1792, 1, 64, 64, bias=(B_B2,), embed=(44, 'x_gu'))
    g += gemm(a, 'x_gu', (D_WS, AT, 896, 0), (D_WS, XN, 896, 0), (D_WS, U, 7168*2, 0), 7168, 2048, 448, 1, 128, 128, embed=(g, 'chain_kernel_done2'))
    return g
try:
    from chain import chain, final
    chain(a, 'chain_kernel', extra); final(a, KNAME)
except ImportError:
    pass
open('parallel_sum__memory_aug_recurrent_mem_tr__dense_activation_gelu__prompt.s', 'w').write(a.text(hdr))
```

```python
from lib import *
HS = 912
def bop(a, op, regs, va, srd, sb, off, fl=''):
    if off >= 4096:
        a.e('s_add_u32 s39, %s, %d' % ('s%d' % sb if sb is not None else '0', off & ~4095)); sb = 39; off &= 4095
    a.e('%s %s, v%d, s[%d:%d], %s offen offset:%d %s' % (op, regs, va, srd, srd+3, 's%d' % sb if sb is not None else '0', off, fl))
def poll(a, nload, vaddr0, step_bytes, dst, srd, soff, width, tagpos):
    L = a.uniq('poll')
    a.e('s_mov_b32 s40, 0')
    a.lab(L)
    for i in range(nload):
        bop(a, 'buffer_load_dwordx%d' % width, 'v[%d:%d]' % (dst+width*i, dst+width*i+width-1), vaddr0, srd, soff, i*step_bytes, 'sc1')
    a.e('s_waitcnt vmcnt(0)')
    first = True
    for i in range(nload):
        for t in tagpos:
            r = dst + width*i + t
            if first: a.e('v_mov_b32 v119, v%d' % r); first = False
            else: a.e('v_and_b32 v119, v119, v%d' % r)
    a.e('v_cmp_ne_u32 vcc, 1, v119')
    a.e('s_add_u32 s40, s40, 1')
    a.e('s_cmp_gt_u32 s40, 0x100000')
    a.e('s_cbranch_scc1 %s_x' % L)
    a.e('s_cbranch_vccnz %s' % L)
    a.lab(L + '_x')

def wfrag(idx, na):
    if idx < na: return 'a[%d:%d]' % (4*idx, 4*idx+3)
    r = 120 + 4*(idx - na); return 'v[%d:%d]' % (r, r+3)

def get_mem(a, ldsoff):
    L = a.uniq('gm')
    a.e('s_cmp_lg_u32 s41, 0'); a.e('s_cbranch_scc1 %s_p' % L)
    for i in range(7):
        bop(a, 'buffer_load_dword', 'v%d' % (60+2*i), 51, 24, None, i*1024)
    a.e('s_waitcnt vmcnt(0)')
    a.e('s_branch %s_w' % L)
    a.lab(L + '_p')
    a.e('s_lshl_b32 s42, s41, 14')
    poll(a, 7, 50, 2048, 60, 12, 42, 2, [1])
    a.lab(L + '_w')
    for i in range(7): a.e('ds_write_b32 v%d, v%d offset:%d' % (52+i, 60+2*i, ldsoff))

def chain(a, name, extra):
    a.begin(name)
    a.e('s_cmp_ge_u32 s2, 44'); a.e('s_cbranch_scc1 x_gf2')
    a.srd(12, D_WS, MBMEM, MBP - MBMEM); a.srd(16, D_WS, MBP, MB_END - MBP); a.srd(24, A_MEM0)
    a.e('v_lshlrev_b32 v50, 3, v0'); a.e('v_lshlrev_b32 v51, 2, v0')
    a.e('v_and_b32 v1, 63, v0'); a.e('v_lshrrev_b32 v2, 6, v0'); a.e('v_and_b32 v3, 15, v0'); a.e('v_bfe_u32 v4, v0, 4, 2')
    a.e('s_nop 0'); a.e('v_readfirstlane_b32 s43, v2')
    a.e('v_lshlrev_b32 v5, 4, v0')
    for i in range(4): a.e('v_mov_b32 v%d, 0' % (8+i))
    for i in range(16): a.e('ds_write_b128 v5, v[8:11] offset:%d' % (i*4096))
    a.e('v_add_u32 v5, 0x10000, v5')
    for i in range(9): a.e('ds_write_b128 v5, v[8:11] offset:%d' % (i*4096))
    a.e('s_waitcnt lgkmcnt(0)'); a.e('s_barrier')
    for i in range(7):
        a.e('v_add_u32 v6, %d, v0' % (256*i)); a.e('s_mov_b32 s44, 0x%x' % ((2**32 + 223)//224)); a.e('v_mul_hi_u32 v7, v6, s44')
        a.e('v_mul_u32_u24 v8, 224, v7'); a.e('v_sub_u32 v8, v6, v8'); a.e('v_mul_u32_u24 v7, %d, v7' % HS); a.e('v_lshl_add_u32 v%d, v8, 2, v7' % (52+i))
    a.e('s_cmp_ge_u32 s2, 16'); a.e('s_cbranch_scc1 %s_val' % name)
    HB = [0, 48*HS]; RED = 2*48*HS
    a.srd(8, D_WS, AT, 16*448*896); a.srd(20, D_WS, XN, 2048*896)
    a.e('s_mul_i32 s44, s2, %d' % (448*896)); a.e('s_mul_i32 s45, s43, %d' % (112*896)); a.e('s_add_u32 s44, s44, s45')
    a.e('v_mul_u32_u24 v6, 896, v3'); a.e('v_lshl_add_u32 v6, v4, 4, v6'); a.e('v_add_u32 v6, s44, v6')
    for t in range(7):
        for ks in range(14):
            a.e('buffer_load_dwordx4 %s, v6, s[8:11], 0 offen offset:%d' % (wfrag(t*14+ks, 64), ks*64))
        a.e('v_add_u32 v6, %d, v6' % (16*896))
    for i in range(7): a.e('v_add_u32 v%d, %d, v%d' % (52+i, 32*HS, 52+i))
    XA = [36, 37, 38, 39, 47, 48, 59]
    for i in range(7):
        a.e('v_add_u32 v6, %d, v0' % (256*i)); a.e('s_mov_b32 s44, 0x%x' % ((2**32 + 55)//56)); a.e('v_mul_hi_u32 v7, v6, s44')
        a.e('v_mul_u32_u24 v8, 56, v7'); a.e('v_sub_u32 v8, v6, v8'); a.e('v_mul_u32_u24 v7, %d, v7' % HS); a.e('v_lshl_add_u32 v%d, v8, 4, v7' % XA[i])
    a.e('v_lshlrev_b32 v49, 4, v0')
    def xs_load():
        for i in range(7): bop(a, 'buffer_load_dwordx4', 'v[%d:%d]' % (88+4*i, 91+4*i), 49, 20, 46, i*4096)
    def xs_store(buf):
        for i in range(7): a.e('ds_write_b128 v%d, v[%d:%d] offset:%d' % (XA[i], 88+4*i, 91+4*i, HB[buf]))
    a.e('s_mov_b32 s46, 0'); xs_load(); a.e('s_waitcnt vmcnt(0)'); xs_store(0)
    a.e('s_mov_b32 s46, %d' % (32*896)); xs_load()
    a.e('v_add_u32 v40, 32, v3'); a.e('v_mul_u32_u24 v40, %d, v40' % HS); a.e('v_lshl_add_u32 v40, v4, 4, v40')
    a.e('v_mul_u32_u24 v41, %d, v3' % HS); a.e('v_lshl_add_u32 v41, v4, 3, v41'); a.e('v_mul_u32_u24 v6, 224, v2'); a.e('v_add_u32 v41, v41, v6')
    a.e('v_mul_u32_u24 v42, 3072, v2'); a.e('v_lshl_add_u32 v42, v4, 8, v42'); a.e('v_lshl_add_u32 v42, v3, 2, v42'); a.e('v_add_u32 v42, %d, v42' % RED)
    a.e('v_and_b32 v43, 7, v1'); a.e('v_bfe_u32 v44, v1, 3, 2'); a.e('v_mul_u32_u24 v45, 640, v44'); a.e('v_lshl_add_u32 v45, v43, 2, v45'); a.e('v_add_u32 v45, %d, v45' % RED)
    a.e('v_mul_u32_u24 v46, 20, v43'); a.e('v_mul_u32_u24 v6, 5, v44'); a.e('v_add_u32 v46, v46, v6'); a.e('s_mul_i32 s44, s2, 160'); a.e('v_add_u32 v46, s44, v46'); a.e('v_lshlrev_b32 v46, 3, v46')
    a.e('s_mov_b32 s41, 0')
    a.lab(name + '_sloop')
    for par in range(2):
        hb = HB[par]
        get_mem(a, hb)
        a.e('s_waitcnt lgkmcnt(0)'); a.e('s_barrier')
        for r in range(28): a.e('v_mov_b32 v%d, 0' % (8+r))
        for half in range(2):
            for k in range(7): a.e('ds_read_b128 v[%d:%d], v40 offset:%d' % (60+4*k, 63+4*k, hb + (half*7+k)*64))
            for k in range(7):
                a.e('s_waitcnt lgkmcnt(%d)' % (6-k))
                for t in range(7):
                    a.e('v_mfma_f32_16x16x32_bf16 v[%d:%d], %s, v[%d:%d], v[%d:%d]' % (8+4*t, 11+4*t, wfrag(t*14+half*7+k, 64), 60+4*k, 63+4*k, 8+4*t, 11+4*t))
        a.e('s_nop 7')
        for t in range(7):
            a.e('v_cvt_pk_bf16_f32 v%d, v%d, v%d' % (8+4*t, 8+4*t, 9+4*t)); a.e('v_cvt_pk_bf16_f32 v%d, v%d, v%d' % (9+4*t, 10+4*t, 11+4*t))
        for q in range(4):
            if q < 3:
                a.e('v_mov_b32 v%d, v%d' % (10+8*q, 12+8*q)); a.e('v_mov_b32 v%d, v%d' % (11+8*q, 13+8*q))
            else:
                a.e('v_mov_b32 v%d, 0' % (10+8*q)); a.e('v_mov_b32 v%d, 0' % (11+8*q))
        for r in range(12): a.e('v_mov_b32 v%d, 0' % (76+r))
        a.e('v_add_u32 v41, %d, v41' % hb)
        for kt in range(3):
            for q in range(4):
                r = 60 + 4*q
                a.e('ds_read_b64 v[%d:%d], v41 offset:%d' % (r, r+1, kt*16*HS + q*64))
                a.e('ds_read_b64 v[%d:%d], v41 offset:%d' % (r+2, r+3, kt*16*HS + q*64 + 32))
            a.e('s_waitcnt lgkmcnt(0)')
            for q in range(4):
                r = 60 + 4*q
                a.e('v_mfma_f32_16x16x32_bf16 v[%d:%d], v[%d:%d], v[%d:%d], v[%d:%d]' % (76+4*kt, 79+4*kt, r, r+3, 8+8*q, 11+8*q, 76+4*kt, 79+4*kt))
        a.e('v_subrev_u32 v41, %d, v41' % hb); a.e('s_nop 7'); a.e('s_nop 3')
        for kt in range(3):
            for r in range(4): a.e('ds_write_b32 v42, v%d offset:%d' % (76+4*kt+r, kt*1024 + r*64))
        a.e('s_waitcnt lgkmcnt(0)'); a.e('s_barrier')
        sk = a.uniq('sk')
        a.e('s_cmp_lg_u32 s43, 0'); a.e('s_cbranch_scc1 %s' % sk)
        dst = [8, 18, 60, 70]
        for w in range(4):
            for k in range(10): a.e('ds_read_b32 v%d, v45 offset:%d' % (dst[w]+k, w*3072 + k*64))
        a.e('s_waitcnt lgkmcnt(0)')
        for k in range(10):
            a.e('v_add_f32 v%d, v%d, v%d' % (8+k, 8+k, 18+k)); a.e('v_add_f32 v%d, v%d, v%d' % (60+k, 60+k, 70+k)); a.e('v_add_f32 v%d, v%d, v%d' % (8+k, 8+k, 60+k))
        a.e('v_max_f32 v20, v8, v9')
        for k in range(2, 10): a.e('v_max_f32 v20, v20, v%d' % (8+k))
        def red(op):
            for m in (8, 16):
                a.e('v_xor_b32 v21, %d, v1' % m); a.e('v_lshlrev_b32 v21, 2, v21'); a.e('ds_bpermute_b32 v22, v21, v20'); a.e('s_waitcnt lgkmcnt(0)'); a.e('%s v20, v20, v22' % op)
        red('v_max_f32')
        for k in range(10):
            a.e('v_sub_f32 v%d, v%d, v20' % (8+k, 8+k)); a.e('v_mul_f32 v%d, 0x3fb8aa3b, v%d' % (8+k, 8+k)); a.e('v_exp_f32 v%d, v%d' % (8+k, 8+k))
        a.e('s_nop 0'); a.e('v_add_f32 v20, v8, v9')
        for k in range(2, 10): a.e('v_add_f32 v20, v20, v%d' % (8+k))
        red('v_add_f32')
        a.e('v_rcp_f32 v20, v20'); a.e('s_nop 0')
        for k in range(10): a.e('v_mul_f32 v%d, v%d, v20' % (8+k, 8+k))
        for k in range(5):
            a.e('v_cvt_pk_bf16_f32 v%d, v%d, v%d' % (24+2*k, 8+2*k, 9+2*k)); a.e('v_mov_b32 v%d, 1' % (25+2*k))
        a.e('s_lshl_b32 s42, s41, 15')
        a.e('s_mov_b32 exec_lo, -1'); a.e('s_mov_b32 exec_hi, 0')
        for k in range(5): a.e('buffer_store_dwordx2 v[%d:%d], v46, s[16:19], s42 offen offset:%d sc1' % (24+2*k, 25+2*k, k*8))
        a.e('s_mov_b64 exec, -1')
        a.lab(sk)
        a.e('s_waitcnt vmcnt(0)')
        xs_store(par ^ 1)
        a.e('s_add_u32 s46, s46, %d' % (32*896)); xs_load()
        a.e('s_add_u32 s41, s41, 1')
    a.e('s_cmp_lt_u32 s41, 64'); a.e('s_cbranch_scc1 %s_sloop' % name)
    a.e('s_branch %s_done' % name)
    a.lab(name + '_val')
    MB = 0; RS = 1296; RT = 16*HS; PT = RT + 16*RS
    a.srd(8, D_WS, WVT, 16*448*896); a.srd(20, D_WS, VOT, 7168*4096); a.srd(28, D_WS, YB, 64*16*448*16)
    a.e('s_sub_u32 s47, s2, 16')
    a.e('s_mul_i32 s44, s43, %d' % (4*448*896)); a.e('s_mul_i32 s45, s47, %d' % (16*896)); a.e('s_add_u32 s44, s44, s45')
    a.e('v_mul_u32_u24 v6, 896, v3'); a.e('v_lshl_add_u32 v6, v4, 4, v6'); a.e('v_add_u32 v6, s44, v6')
    for hh in range(4):
        for ks in range(14):
            a.e('buffer_load_dwordx4 %s, v6, s[8:11], 0 offen offset:%d' % (wfrag(hh*14+ks, 64), ks*64))
        a.e('v_add_u32 v6, %d, v6' % (448*896))
    for i in range(4):
        a.e('v_add_u32 v6, %d, v0' % (256*i)); a.e('v_lshrrev_b32 v7, 6, v6'); a.e('v_bfe_u32 v8, v6, 2, 4'); a.e('v_and_b32 v9, 3, v6')
        a.e('v_mul_u32_u24 v10, 448, v7'); a.e('v_add_u32 v10, v10, v8'); a.e('s_lshl_b32 s44, s47, 4'); a.e('v_add_u32 v10, s44, v10')
        a.e('v_lshlrev_b32 v10, 12, v10'); a.e('v_lshl_add_u32 v%d, v9, 4, v10' % (36+i))
        a.e('v_mul_u32_u24 v10, %d, v8' % RS); a.e('v_mul_u32_u24 v11, 80, v7'); a.e('v_add_u32 v10, v10, v11'); a.e('v_lshl_add_u32 v10, v9, 4, v10'); a.e('v_add_u32 v%d, %d, v10' % (40+i, RT))
    def vo_load():
        for i in range(4): a.e('buffer_load_dwordx4 v[%d:%d], v%d, s[20:23], s46 offen' % (88+4*i, 91+4*i, 36+i))
    a.e('s_mov_b32 s46, 0'); vo_load()
    for i in range(5):
        a.e('v_add_u32 v6, %d, v0' % (256*i)); a.e('v_lshlrev_b32 v6, 1, v6')
        a.e('s_mov_b32 s44, 0x%x' % ((2**32 + 19)//20)); a.e('v_mul_hi_u32 v7, v6, s44'); a.e('v_mul_u32_u24 v8, 20, v7'); a.e('v_sub_u32 v8, v6, v8')
        a.e('v_and_b32 v9, 7, v7'); a.e('v_lshrrev_b32 v7, 3, v7')
        a.e('v_mul_u32_u24 v9, %d, v9' % RS); a.e('v_mul_u32_u24 v7, 80, v7'); a.e('v_add_u32 v9, v9, v7'); a.e('v_lshl_add_u32 v9, v8, 2, v9'); a.e('v_add_u32 v%d, %d, v9' % (44+i, PT))
    a.e('v_lshlrev_b32 v49, 4, v0')
    a.e('v_mul_u32_u24 v30, %d, v3' % HS); a.e('v_lshl_add_u32 v30, v4, 4, v30')
    a.e('v_mul_u32_u24 v31, %d, v3' % RS); a.e('v_lshl_add_u32 v31, v4, 4, v31')
    a.e('v_mul_u32_u24 v32, %d, v3' % RS); a.e('v_lshl_add_u32 v32, v4, 3, v32'); a.e('v_mul_u32_u24 v6, 320, v2'); a.e('v_add_u32 v32, v32, v6'); a.e('v_add_u32 v32, %d, v32' % (RT + 64))
    a.e('v_mul_u32_u24 v33, %d, v2' % (4*448)); a.e('v_add_u32 v33, v33, v3'); a.e('s_lshl_b32 s44, s47, 4'); a.e('v_add_u32 v33, s44, v33'); a.e('v_lshlrev_b32 v33, 4, v33'); a.e('v_lshl_add_u32 v33, v4, 3, v33')
    a.e('v_mul_u32_u24 v34, 224, v3'); a.e('v_lshl_add_u32 v34, v4, 1, v34'); a.e('s_lshl_b32 s44, s47, 3'); a.e('v_add_u32 v34, s44, v34'); a.e('v_lshlrev_b32 v34, 3, v34')
    a.e('s_mov_b32 s41, 0')
    a.lab(name + '_vloop')
    a.e('s_waitcnt vmcnt(0)')
    for i in range(4): a.e('ds_write_b128 v%d, v[%d:%d]' % (40+i, 88+4*i, 91+4*i))
    a.e('s_add_u32 s46, s46, 64'); a.e('s_min_u32 s46, s46, %d' % (63*64)); vo_load()
    get_mem(a, MB)
    a.e('s_waitcnt lgkmcnt(0)'); a.e('s_barrier')
    for r in range(16): a.e('v_mov_b32 v%d, 0' % (8+r))
    for half in range(2):
        for k in range(7): a.e('ds_read_b128 v[%d:%d], v30 offset:%d' % (60+4*k, 63+4*k, MB + (half*7+k)*64))
        for k in range(7):
            a.e('s_waitcnt lgkmcnt(%d)' % (6-k))
            for hh in range(4):
                a.e('v_mfma_f32_16x16x32_bf16 v[%d:%d], v[%d:%d], %s, v[%d:%d]' % (8+4*hh, 11+4*hh, 60+4*k, 63+4*k, wfrag(hh*14+half*7+k, 64), 8+4*hh, 11+4*hh))
    a.e('s_nop 7')
    for hh in range(4):
        a.e('v_cvt_pk_bf16_f32 v%d, v%d, v%d' % (8+4*hh, 8+4*hh, 9+4*hh)); a.e('v_cvt_pk_bf16_f32 v%d, v%d, v%d' % (9+4*hh, 10+4*hh, 11+4*hh))
    a.e('s_mul_i32 s44, s41, %d' % (16*448*16))
    a.e('s_mov_b32 exec_lo, -1'); a.e('s_mov_b32 exec_hi, 0')
    for hh in range(4):
        a.e('ds_write_b64 v32, v[%d:%d] offset:%d' % (8+4*hh, 9+4*hh, hh*80))
        a.e('buffer_store_dwordx2 v[%d:%d], v33, s[28:31], s44 offen offset:%d' % (8+4*hh, 9+4*hh, 0) if hh == 0 else
            'v_add_u32 v35, %d, v33\nbuffer_store_dwordx2 v[%d:%d], v35, s[28:31], s44 offen' % (hh*448*16, 8+4*hh, 9+4*hh))
    a.e('s_mov_b64 exec, -1')
    a.e('s_lshl_b32 s42, s41, 15')
    poll(a, 5, 49, 4096, 60, 16, 42, 4, [1, 3])
    for i in range(5):
        a.e('ds_write_b32 v%d, v%d' % (44+i, 60+4*i)); a.e('ds_write_b32 v%d, v%d offset:4' % (44+i, 62+4*i))
    a.e('s_waitcnt lgkmcnt(0)'); a.e('s_barrier')
    sk = a.uniq('vs')
    a.e('s_cmp_lg_u32 s43, 0'); a.e('s_cbranch_scc1 %s' % sk)
    for r in range(4): a.e('v_mov_b32 v%d, 0' % (8+r))
    for blk in range(7):
        nk = 3 if blk < 6 else 2
        for k in range(nk):
            a.e('ds_read_b128 v[%d:%d], v31 offset:%d' % (60+8*k, 63+8*k, RT + (blk*3+k)*64))
            a.e('ds_read_b128 v[%d:%d], v31 offset:%d' % (64+8*k, 67+8*k, PT + (blk*3+k)*64))
        a.e('s_waitcnt lgkmcnt(0)')
        for k in range(nk):
            a.e('v_mfma_f32_16x16x32_bf16 v[8:11], v[%d:%d], v[%d:%d], v[8:11]' % (60+8*k, 63+8*k, 64+8*k, 67+8*k))
    a.e('s_nop 7'); a.e('s_nop 3')
    a.e('v_cvt_pk_bf16_f32 v12, v8, v9'); a.e('v_mov_b32 v13, 1'); a.e('v_cvt_pk_bf16_f32 v14, v10, v11'); a.e('v_mov_b32 v15, 1')
    a.e('s_add_u32 s42, s41, 1'); a.e('s_lshl_b32 s42, s42, 14')
    a.e('v_cmp_gt_u32 vcc, 8, v3'); a.e('s_and_b64 exec, exec, vcc')
    a.e('buffer_store_dwordx4 v[12:15], v34, s[12:15], s42 offen sc1')
    a.e('s_mov_b64 exec, -1')
    a.lab(sk)
    a.e('s_barrier')
    a.e('s_add_u32 s41, s41, 1'); a.e('s_cmp_lt_u32 s41, 64'); a.e('s_cbranch_scc1 %s_vloop' % name)
    a.lab(name + '_done')
    a.e('s_endpgm')
    g = extra()
    a.lab(name + '_done2')
    a.end(name, 256, 44 + g, 25*4096, na=256)


def final(a, name):
    a.begin(name)
    a.e('s_cmp_ge_u32 s2, 256'); a.e('s_cbranch_scc1 %s_done' % name)
    a.e('s_lshr_b32 s41, s2, 2'); a.e('s_and_b32 s47, s2, 3')
    a.srd(8, D_WS, XN, 2048*896); a.srd(12, D_WS, MBMEM, MBP - MBMEM); a.srd(24, A_MEM0)
    a.srd(16, D_WS, U, 2048*14336); a.srd(20, D_WS, VOT, 7168*4096); a.srd(28, D_WS, YB, 64*16*448*16)
    a.e('v_and_b32 v1, 63, v0'); a.e('v_lshrrev_b32 v2, 6, v0'); a.e('v_and_b32 v3, 15, v0'); a.e('v_bfe_u32 v4, v0, 4, 2')
    a.e('v_lshlrev_b32 v5, 4, v0')
    for i in range(4): a.e('v_mov_b32 v%d, 0' % (8+i))
    for i in range(3): a.e('ds_write_b128 v5, v[8:11] offset:%d' % (32*HS + i*4096))
    a.e('s_waitcnt lgkmcnt(0)'); a.e('s_barrier')
    a.e('s_mul_i32 s46, s41, %d' % (32*896))
    for i in range(7):
        a.e('v_add_u32 v6, %d, v0' % (256*i)); a.e('s_mov_b32 s44, 0x%x' % ((2**32 + 55)//56)); a.e('v_mul_hi_u32 v7, v6, s44')
        a.e('v_mul_u32_u24 v8, 56, v7'); a.e('v_sub_u32 v8, v6, v8'); a.e('v_mul_u32_u24 v7, %d, v7' % HS); a.e('v_lshl_add_u32 v9, v8, 4, v7')
        bop(a, 'buffer_load_dwordx4', 'v[12:15]', 5, 8, 46, i*4096); a.e('s_waitcnt vmcnt(0)'); a.e('ds_write_b128 v9, v[12:15]')
    a.e('v_lshlrev_b32 v50, 3, v0'); a.e('v_lshlrev_b32 v51, 2, v0'); a.e('s_lshl_b32 s42, s41, 14')
    for i in range(7):
        a.e('v_add_u32 v6, %d, v0' % (256*i)); a.e('s_mov_b32 s44, 0x%x' % ((2**32 + 223)//224)); a.e('v_mul_hi_u32 v7, v6, s44')
        a.e('v_mul_u32_u24 v8, 224, v7'); a.e('v_sub_u32 v8, v6, v8'); a.e('v_mul_u32_u24 v7, %d, v7' % HS); a.e('v_lshl_add_u32 v9, v8, 2, v7')
        L = a.uniq('fm')
        a.e('s_cmp_lg_u32 s41, 0'); a.e('s_cbranch_scc1 %s_a' % L)
        bop(a, 'buffer_load_dword', 'v12', 51, 24, None, i*1024); a.e('s_branch %s_b' % L)
        a.lab(L + '_a'); bop(a, 'buffer_load_dword', 'v12', 50, 12, 42, i*2048); a.lab(L + '_b')
        a.e('s_waitcnt vmcnt(0)'); a.e('ds_write_b32 v9, v12 offset:%d' % (32*HS))
    a.e('s_waitcnt lgkmcnt(0)'); a.e('s_barrier')
    a.e('v_mul_u32_u24 v40, %d, v3' % HS); a.e('v_lshl_add_u32 v40, v4, 4, v40')
    a.e('s_lshl_b32 s44, s41, 5'); a.e('v_add_u32 v41, s44, v3'); a.e('s_mov_b32 s45, 14336'); a.e('v_mul_lo_u32 v41, v41, s45'); a.e('v_lshl_add_u32 v41, v4, 4, v41')
    a.e('v_mul_u32_u24 v6, 3584, v2'); a.e('v_add_u32 v41, v41, v6')
    a.e('s_mul_i32 s44, s47, 112'); a.e('v_mul_u32_u24 v42, 1792, v2'); a.e('v_add_u32 v42, v42, v3'); a.e('v_add_u32 v42, s44, v42'); a.e('v_mov_b32 v43, v42')
    a.e('v_lshlrev_b32 v42, 12, v42'); a.e('v_lshl_add_u32 v42, v4, 3, v42'); a.e('s_lshl_b32 s44, s41, 6'); a.e('v_add_u32 v42, s44, v42')
    a.e('v_lshlrev_b32 v43, 4, v43'); a.e('v_lshl_add_u32 v43, v4, 3, v43'); a.e('s_mul_i32 s44, s41, 114688'); a.e('v_add_u32 v43, s44, v43')
    a.e('v_cmp_lt_u32 vcc, 1, v4'); a.e('v_mov_b32 v6, 0x7f000000'); a.e('s_nop 1'); a.e('v_cndmask_b32 v44, 0, v6, vcc'); a.e('v_add_u32 v43, v43, v44')
    OA = 128
    for r in range(56): a.e('v_mov_b32 v%d, 0' % (OA + r))
    a.e('v_mov_b32 v118, 0xff800000')
    for hh in range(4):
        for r in range(24): a.e('v_mov_b32 v%d, 0' % (8 + r))
        for half in range(2):
            for k in range(7):
                for qt in range(2):
                    a.e('s_mov_b32 s45, %d' % (qt*16*14336 + hh*896))
                    ur = 184 + (k*2+qt)*4
                    a.e('buffer_load_dwordx4 v[%d:%d], v41, s[16:19], s45 offen offset:%d' % (ur, ur+3, (half*7+k)*64))
            for k in range(7):
                for kt in range(3): a.e('ds_read_b128 v[%d:%d], v40 offset:%d' % (68+4*kt, 71+4*kt, kt*16*HS + (half*7+k)*64))
                a.e('s_waitcnt vmcnt(%d) lgkmcnt(0)' % (12 - 2*k))
                for kt in range(3):
                    for qt in range(2):
                        c = 8 + (kt*2+qt)*4; ur = 184 + (k*2+qt)*4
                        a.e('v_mfma_f32_16x16x32_bf16 v[%d:%d], v[%d:%d], v[%d:%d], v[%d:%d]' % (c, c+3, 68+4*kt, 71+4*kt, ur, ur+3, c, c+3))
        for jt in range(7):
            rb = 184 + 8*jt
            a.e('s_mov_b32 s45, %d' % ((hh*448 + jt*16)*4096))
            a.e('buffer_load_dwordx2 v[%d:%d], v42, s[20:23], s45 offen' % (rb, rb+1)); a.e('buffer_load_dwordx2 v[%d:%d], v42, s[20:23], s45 offen offset:32' % (rb+2, rb+3))
            a.e('s_mov_b32 s45, %d' % ((hh*448 + jt*16)*16))
            a.e('buffer_load_dwordx2 v[%d:%d], v43, s[28:31], s45 offen' % (rb+4, rb+5))
            a.e('v_mov_b32 v%d, 0' % (rb+6)); a.e('v_mov_b32 v%d, 0' % (rb+7))
        a.e('s_nop 7')
        for qt in range(2):
            for kt in range(3):
                for r in range(4):
                    c = 8 + (kt*2+qt)*4 + r
                    if kt < 2:
                        a.e('v_lshl_add_u32 v6, v4, 2, %d' % (16*kt + r)); a.e('v_add_u32 v7, %d, v3' % (16*qt)); a.e('v_cmp_le_u32 vcc, v6, v7')
                    else:
                        a.e('v_cmp_gt_u32 vcc, 2, v4')
                    a.e('s_nop 1'); a.e('v_cndmask_b32 v%d, v118, v%d, vcc' % (c, c))
            regs = [8 + (kt*2+qt)*4 + r for kt in range(3) for r in range(4)]
            a.e('v_max_f32 v32, v%d, v%d' % (regs[0], regs[1]))
            for x in regs[2:]: a.e('v_max_f32 v32, v32, v%d' % x)
            def red(op):
                for m in (16, 32):
                    a.e('v_xor_b32 v33, %d, v1' % m); a.e('v_lshlrev_b32 v33, 2, v33'); a.e('ds_bpermute_b32 v34, v33, v32'); a.e('s_waitcnt lgkmcnt(0)'); a.e('%s v32, v32, v34' % op)
            red('v_max_f32')
            for x in regs:
                a.e('v_sub_f32 v%d, v%d, v32' % (x, x)); a.e('v_mul_f32 v%d, 0x3fb8aa3b, v%d' % (x, x)); a.e('v_exp_f32 v%d, v%d' % (x, x))
            a.e('s_nop 0'); a.e('v_add_f32 v32, v%d, v%d' % (regs[0], regs[1]))
            for x in regs[2:]: a.e('v_add_f32 v32, v32, v%d' % x)
            red('v_add_f32')
            a.e('v_rcp_f32 v32, v32'); a.e('s_nop 0')
            for x in regs: a.e('v_mul_f32 v%d, v%d, v32' % (x, x))
            pb = 80 + 8*qt
            for kt in range(3):
                c = 8 + (kt*2+qt)*4
                a.e('v_cvt_pk_bf16_f32 v%d, v%d, v%d' % (pb+2*kt, c, c+1)); a.e('v_cvt_pk_bf16_f32 v%d, v%d, v%d' % (pb+2*kt+1, c+2, c+3))
            a.e('v_mov_b32 v%d, 0' % (pb+6)); a.e('v_mov_b32 v%d, 0' % (pb+7))
        a.e('s_waitcnt vmcnt(0)')
        for jt in range(7):
            rb = 184 + 8*jt
            for qt in range(2):
                c = OA + (jt*2+qt)*4; pb = 80 + 8*qt
                a.e('v_mfma_f32_16x16x32_bf16 v[%d:%d], v[%d:%d], v[%d:%d], v[%d:%d]' % (c, c+3, rb, rb+3, pb, pb+3, c, c+3))
                a.e('v_mfma_f32_16x16x32_bf16 v[%d:%d], v[%d:%d], v[%d:%d], v[%d:%d]' % (c, c+3, rb+4, rb+7, pb+4, pb+7, c, c+3))
    a.e('s_nop 7'); a.e('s_nop 3'); a.e('s_barrier')
    QS = 464
    a.e('v_mul_u32_u24 v5, %d, v2' % (32*QS)); a.e('v_mul_u32_u24 v6, %d, v3' % QS); a.e('v_add_u32 v5, v5, v6'); a.e('v_lshl_add_u32 v5, v4, 4, v5')
    for jt in range(7):
        for qt in range(2):
            c = OA + (jt*2+qt)*4
            a.e('ds_write_b128 v5, v[%d:%d] offset:%d' % (c, c+3, qt*16*QS + jt*64))
    a.e('s_waitcnt lgkmcnt(0)'); a.e('s_barrier')
    a.srd(8, A_X); a.srd(12, D_WS, BO, 2048*896); a.srd(16, D_OUT)
    for it in range(4):
        a.e('v_add_u32 v6, %d, v0' % (256*it)); a.e('s_mov_b32 s44, 0x%x' % ((2**32 + 27)//28)); a.e('v_mul_hi_u32 v7, v6, s44')
        a.e('v_mul_u32_u24 v8, 28, v7'); a.e('v_sub_u32 v8, v6, v8')
        a.e('v_cmp_gt_u32 vcc, 896, v6'); a.e('s_mov_b64 s[36:37], exec'); a.e('s_and_b64 exec, exec, vcc')
        a.e('v_mul_u32_u24 v9, %d, v7' % QS); a.e('v_lshl_add_u32 v9, v8, 4, v9')
        for w in range(4): a.e('ds_read_b128 v[%d:%d], v9 offset:%d' % (12+4*w, 15+4*w, w*32*QS))
        a.e('s_lshl_b32 s44, s41, 5'); a.e('v_add_u32 v10, s44, v7'); a.e('v_mul_u32_u24 v10, 896, v10'); a.e('v_lshl_add_u32 v10, v8, 3, v10'); a.e('s_mul_i32 s44, s47, 224'); a.e('v_add_u32 v10, s44, v10')
        a.e('buffer_load_dwordx2 v[30:31], v10, s[8:11], 0 offen'); a.e('buffer_load_dwordx2 v[32:33], v10, s[12:15], 0 offen')
        a.e('s_waitcnt vmcnt(0) lgkmcnt(0)')
        for r in range(4):
            a.e('v_add_f32 v%d, v%d, v%d' % (12+r, 12+r, 16+r)); a.e('v_add_f32 v%d, v%d, v%d' % (20+r, 20+r, 24+r)); a.e('v_add_f32 v%d, v%d, v%d' % (12+r, 12+r, 20+r))
        def unpack(dst, src):
            for r in range(4):
                if r & 1: a.e('v_and_b32 v%d, 0xffff0000, v%d' % (dst+r, src+(r>>1)))
                else: a.e('v_lshlrev_b32 v%d, 16, v%d' % (dst+r, src+(r>>1)))
        def rnd():
            a.e('v_cvt_pk_bf16_f32 v34, v12, v13'); a.e('v_cvt_pk_bf16_f32 v35, v14, v15')
        rnd(); unpack(12, 34); unpack(16, 30)
        for r in range(4): a.e('v_add_f32 v%d, v%d, v%d' % (12+r, 12+r, 16+r))
        rnd(); unpack(12, 34); unpack(16, 32)
        for r in range(4): a.e('v_add_f32 v%d, v%d, v%d' % (12+r, 12+r, 16+r))
        rnd()
        a.e('buffer_store_dwordx2 v[34:35], v10, s[16:19], 0 offen')
        a.e('s_mov_b64 exec, s[36:37]')
    a.lab(name + '_done')
    a.end(name, 240, 256, 4*32*464)
```

```python
from lib import *
HS = 912
def bop(a, op, regs, va, srd, sb, off, fl=''):
    if off >= 4096:
        a.e('s_add_u32 s39, %s, %d' % ('s%d' % sb if sb is not None else '0', off & ~4095)); sb = 39; off &= 4095
    a.e('%s %s, v%d, s[%d:%d], %s offen offset:%d %s' % (op, regs, va, srd, srd+3, 's%d' % sb if sb is not None else '0', off, fl))
def poll(a, nload, vaddr0, step_bytes, dst, srd, soff, width, tagpos):
    L = a.uniq('poll')
    a.e('s_mov_b32 s40, 0')
    a.lab(L)
    for i in range(nload):
        bop(a, 'buffer_load_dwordx%d' % width, 'v[%d:%d]' % (dst+width*i, dst+width*i+width-1), vaddr0, srd, soff, i*step_bytes, 'sc1')
    a.e('s_waitcnt vmcnt(0)')
    first = True
    for i in range(nload):
        for t in tagpos:
            r = dst + width*i + t
            if first: a.e('v_mov_b32 v119, v%d' % r); first = False
            else: a.e('v_and_b32 v119, v119, v%d' % r)
    a.e('v_cmp_ne_u32 vcc, 1, v119')
    a.e('s_add_u32 s40, s40, 1')
    a.e('s_cmp_gt_u32 s40, 0x100000')
    a.e('s_cbranch_scc1 %s_x' % L)
    a.e('s_cbranch_vccnz %s' % L)
    a.lab(L + '_x')

def wfrag(idx, na):
    if idx < na: return 'a[%d:%d]' % (4*idx, 4*idx+3)
    r = 120 + 4*(idx - na); return 'v[%d:%d]' % (r, r+3)

def get_mem(a, ldsoff):
    L = a.uniq('gm')
    a.e('s_cmp_lg_u32 s41, 0'); a.e('s_cbranch_scc1 %s_p' % L)
    for i in range(7):
        bop(a, 'buffer_load_dword', 'v%d' % (60+2*i), 51, 24, None, i*1024)
    a.e('s_waitcnt vmcnt(0)')
    a.e('s_branch %s_w' % L)
    a.lab(L + '_p')
    a.e('s_lshl_b32 s42, s41, 14')
    poll(a, 7, 50, 2048, 60, 12, 42, 2, [1])
    a.lab(L + '_w')
    for i in range(7): a.e('ds_write_b32 v%d, v%d offset:%d' % (52+i, 60+2*i, ldsoff))

def chain(a, name, extra):
    a.begin(name)
    a.e('s_cmp_ge_u32 s2, 44'); a.e('s_cbranch_scc1 x_gf2')
    a.srd(12, D_WS, MBMEM, MBP - MBMEM); a.srd(16, D_WS, MBP, MB_END - MBP); a.srd(24, A_MEM0)
    a.e('v_lshlrev_b32 v50, 3, v0'); a.e('v_lshlrev_b32 v51, 2, v0')
    a.e('v_and_b32 v1, 63, v0'); a.e('v_lshrrev_b32 v2, 6, v0'); a.e('v_and_b32 v3, 15, v0'); a.e('v_bfe_u32 v4, v0, 4, 2')
    a.e('s_nop 0'); a.e('v_readfirstlane_b32 s43, v2')
    a.e('v_lshlrev_b32 v5, 4, v0')
    for i in range(4): a.e('v_mov_b32 v%d, 0' % (8+i))
    for i in range(16): a.e('ds_write_b128 v5, v[8:11] offset:%d' % (i*4096))
    a.e('v_add_u32 v5, 0x10000, v5')
    for i in range(9): a.e('ds_write_b128 v5, v[8:11] offset:%d' % (i*4096))
    a.e('s_waitcnt lgkmcnt(0)'); a.e('s_barrier')
    for i in range(7):
        a.e('v_add_u32 v6, %d, v0' % (256*i)); a.e('s_mov_b32 s44, 0x%x' % ((2**32 + 223)//224)); a.e('v_mul_hi_u32 v7, v6, s44')
        a.e('v_mul_u32_u24 v8, 224, v7'); a.e('v_sub_u32 v8, v6, v8'); a.e('v_mul_u32_u24 v7, %d, v7' % HS); a.e('v_lshl_add_u32 v%d, v8, 2, v7' % (52+i))
    a.e('s_cmp_ge_u32 s2, 16'); a.e('s_cbranch_scc1 %s_val' % name)
    HB = [0, 48*HS]; RED = 2*48*HS
    a.srd(8, D_WS, AT, 16*448*896); a.srd(20, D_WS, XN, 2048*896)
    a.e('s_mul_i32 s44, s2, %d' % (448*896)); a.e('s_mul_i32 s45, s43, %d' % (112*896)); a.e('s_add_u32 s44, s44, s45')
    a.e('v_mul_u32_u24 v6, 896, v3'); a.e('v_lshl_add_u32 v6, v4, 4, v6'); a.e('v_add_u32 v6, s44, v6')
    for t in range(7):
        for ks in range(14):
            a.e('buffer_load_dwordx4 %s, v6, s[8:11], 0 offen offset:%d' % (wfrag(t*14+ks, 64), ks*64))
        a.e('v_add_u32 v6, %d, v6' % (16*896))
    for i in range(7): a.e('v_add_u32 v%d, %d, v%d' % (52+i, 32*HS, 52+i))
    XA = [36, 37, 38, 39, 47, 48, 59]
    for i in range(7):
        a.e('v_add_u32 v6, %d, v0' % (256*i)); a.e('s_mov_b32 s44, 0x%x' % ((2**32 + 55)//56)); a.e('v_mul_hi_u32 v7, v6, s44')
        a.e('v_mul_u32_u24 v8, 56, v7'); a.e('v_sub_u32 v8, v6, v8'); a.e('v_mul_u32_u24 v7, %d, v7' % HS); a.e('v_lshl_add_u32 v%d, v8, 4, v7' % XA[i])
    a.e('v_lshlrev_b32 v49, 4, v0')
    def xs_load():
        for i in range(7): bop(a, 'buffer_load_dwordx4', 'v[%d:%d]' % (88+4*i, 91+4*i), 49, 20, 46, i*4096)
    def xs_store(buf):
        for i in range(7): a.e('ds_write_b128 v%d, v[%d:%d] offset:%d' % (XA[i], 88+4*i, 91+4*i, HB[buf]))
    a.e('s_mov_b32 s46, 0'); xs_load(); a.e('s_waitcnt vmcnt(0)'); xs_store(0)
    a.e('s_mov_b32 s46, %d' % (32*896)); xs_load()
    a.e('v_add_u32 v40, 32, v3'); a.e('v_mul_u32_u24 v40, %d, v40' % HS); a.e('v_lshl_add_u32 v40, v4, 4, v40')
    a.e('v_mul_u32_u24 v41, %d, v3' % HS); a.e('v_lshl_add_u32 v41, v4, 3, v41'); a.e('v_mul_u32_u24 v6, 224, v2'); a.e('v_add_u32 v41, v41, v6')
    a.e('v_lshlrev_b32 v42, 2, v2'); a.e('v_lshl_add_u32 v42, v4, 10, v42'); a.e('v_lshl_add_u32 v42, v3, 4, v42'); a.e('v_add_u32 v42, %d, v42' % RED)
    a.e('v_and_b32 v43, 7, v1'); a.e('v_bfe_u32 v44, v1, 3, 2'); a.e('v_mul_u32_u24 v45, 2560, v44'); a.e('v_lshl_add_u32 v45, v43, 4, v45'); a.e('v_add_u32 v45, %d, v45' % RED)
    a.e('v_mul_u32_u24 v46, 20, v43'); a.e('v_mul_u32_u24 v6, 5, v44'); a.e('v_add_u32 v46, v46, v6'); a.e('s_mul_i32 s44, s2, 160'); a.e('v_add_u32 v46, s44, v46'); a.e('v_lshlrev_b32 v46, 3, v46')
    a.e('s_mov_b32 s41, 0')
    a.lab(name + '_sloop')
    for par in range(2):
        hb = HB[par]
        get_mem(a, hb)
        a.e('s_waitcnt lgkmcnt(0)'); a.e('s_barrier')
        for r in range(28): a.e('v_mov_b32 v%d, 0' % (8+r))
        for half in range(2):
            for k in range(7): a.e('ds_read_b128 v[%d:%d], v40 offset:%d' % (60+4*k, 63+4*k, hb + (half*7+k)*64))
            for k in range(7):
                a.e('s_waitcnt lgkmcnt(%d)' % (6-k))
                for t in range(7):
                    a.e('v_mfma_f32_16x16x32_bf16 v[%d:%d], %s, v[%d:%d], v[%d:%d]' % (8+4*t, 11+4*t, wfrag(t*14+half*7+k, 64), 60+4*k, 63+4*k, 8+4*t, 11+4*t))
        a.e('s_nop 7')
        for t in range(7):
            a.e('v_cvt_pk_bf16_f32 v%d, v%d, v%d' % (8+4*t, 8+4*t, 9+4*t)); a.e('v_cvt_pk_bf16_f32 v%d, v%d, v%d' % (9+4*t, 10+4*t, 11+4*t))
        for q in range(4):
            if q < 3:
                a.e('v_mov_b32 v%d, v%d' % (10+8*q, 12+8*q)); a.e('v_mov_b32 v%d, v%d' % (11+8*q, 13+8*q))
            else:
                a.e('v_mov_b32 v%d, 0' % (10+8*q)); a.e('v_mov_b32 v%d, 0' % (11+8*q))
        for r in range(12): a.e('v_mov_b32 v%d, 0' % (76+r))
        a.e('v_add_u32 v41, %d, v41' % hb)
        for kt in range(3):
            for q in range(4):
                r = 60 + 4*q
                a.e('ds_read_b64 v[%d:%d], v41 offset:%d' % (r, r+1, kt*16*HS + q*64))
                a.e('ds_read_b64 v[%d:%d], v41 offset:%d' % (r+2, r+3, kt*16*HS + q*64 + 32))
            a.e('s_waitcnt lgkmcnt(0)')
            for q in range(4):
                r = 60 + 4*q
                a.e('v_mfma_f32_16x16x32_bf16 v[%d:%d], v[%d:%d], v[%d:%d], v[%d:%d]' % (76+4*kt, 79+4*kt, r, r+3, 8+8*q, 11+8*q, 76+4*kt, 79+4*kt))
        a.e('v_subrev_u32 v41, %d, v41' % hb); a.e('s_nop 7'); a.e('s_nop 3')
        for kt in range(3):
            for r in range(4): a.e('ds_write_b32 v42, v%d offset:%d' % (76+4*kt+r, kt*4096 + r*256))
        a.e('s_waitcnt lgkmcnt(0)'); a.e('s_barrier')
        sk = a.uniq('sk')
        a.e('s_cmp_lg_u32 s43, 0'); a.e('s_cbranch_scc1 %s' % sk)
        for k in range(10): a.e('ds_read_b128 v[%d:%d], v45 offset:%d' % (((60+4*k, 63+4*k) if k < 7 else (24+4*(k-7), 27+4*(k-7))) + (k*256,)))
        for k in range(10):
            b = 60+4*k if k < 7 else 24+4*(k-7)
            a.e('s_waitcnt lgkmcnt(%d)' % (9-k))
            a.e('v_add_f32 v%d, v%d, v%d' % (b, b, b+1)); a.e('v_add_f32 v%d, v%d, v%d' % (b+2, b+2, b+3)); a.e('v_add_f32 v%d, v%d, v%d' % (8+k, b, b+2))
        a.e('v_max_f32 v20, v8, v9')
        for k in range(2, 10): a.e('v_max_f32 v20, v20, v%d' % (8+k))
        def red(op):
            for m in (8, 16):
                a.e('v_xor_b32 v21, %d, v1' % m); a.e('v_lshlrev_b32 v21, 2, v21'); a.e('ds_bpermute_b32 v22, v21, v20'); a.e('s_waitcnt lgkmcnt(0)'); a.e('%s v20, v20, v22' % op)
        red('v_max_f32')
        for k in range(10):
            a.e('v_sub_f32 v%d, v%d, v20' % (8+k, 8+k)); a.e('v_mul_f32 v%d, 0x3fb8aa3b, v%d' % (8+k, 8+k)); a.e('v_exp_f32 v%d, v%d' % (8+k, 8+k))
        a.e('s_nop 0'); a.e('v_add_f32 v20, v8, v9')
        for k in range(2, 10): a.e('v_add_f32 v20, v20, v%d' % (8+k))
        red('v_add_f32')
        a.e('v_rcp_f32 v20, v20'); a.e('s_nop 0')
        for k in range(10): a.e('v_mul_f32 v%d, v%d, v20' % (8+k, 8+k))
        for k in range(5):
            a.e('v_cvt_pk_bf16_f32 v%d, v%d, v%d' % (24+2*k, 8+2*k, 9+2*k)); a.e('v_mov_b32 v%d, 1' % (25+2*k))
        a.e('s_lshl_b32 s42, s41, 15')
        a.e('s_mov_b32 exec_lo, -1'); a.e('s_mov_b32 exec_hi, 0')
        for k in range(5): a.e('buffer_store_dwordx2 v[%d:%d], v46, s[16:19], s42 offen offset:%d sc1' % (24+2*k, 25+2*k, k*8))
        a.e('s_mov_b64 exec, -1')
        a.lab(sk)
        a.e('s_waitcnt vmcnt(0)')
        xs_store(par ^ 1)
        a.e('s_add_u32 s46, s46, %d' % (32*896)); xs_load()
        a.e('s_add_u32 s41, s41, 1')
    a.e('s_cmp_lt_u32 s41, 64'); a.e('s_cbranch_scc1 %s_sloop' % name)
    a.e('s_branch %s_done' % name)
    a.lab(name + '_val')
    MB = 0; RS = 1296; RT = 16*HS; PT = RT + 16*RS
    a.srd(8, D_WS, WVT, 16*448*896); a.srd(20, D_WS, VOT, 7168*4096); a.srd(28, D_WS, YB, 64*16*448*16)
    a.e('s_sub_u32 s47, s2, 16')
    a.e('s_mul_i32 s44, s43, %d' % (4*448*896)); a.e('s_mul_i32 s45, s47, %d' % (16*896)); a.e('s_add_u32 s44, s44, s45')
    a.e('v_mul_u32_u24 v6, 896, v3'); a.e('v_lshl_add_u32 v6, v4, 4, v6'); a.e('v_add_u32 v6, s44, v6')
    for hh in range(4):
        for ks in range(14):
            a.e('buffer_load_dwordx4 %s, v6, s[8:11], 0 offen offset:%d' % (wfrag(hh*14+ks, 64), ks*64))
        a.e('v_add_u32 v6, %d, v6' % (448*896))
    for i in range(4):
        a.e('v_add_u32 v6, %d, v0' % (256*i)); a.e('v_lshrrev_b32 v7, 6, v6'); a.e('v_bfe_u32 v8, v6, 2, 4'); a.e('v_and_b32 v9, 3, v6')
        a.e('v_mul_u32_u24 v10, 448, v7'); a.e('v_add_u32 v10, v10, v8'); a.e('s_lshl_b32 s44, s47, 4'); a.e('v_add_u32 v10, s44, v10')
        a.e('v_lshlrev_b32 v10, 12, v10'); a.e('v_lshl_add_u32 v%d, v9, 4, v10' % (36+i))
        a.e('v_mul_u32_u24 v10, %d, v8' % RS); a.e('v_mul_u32_u24 v11, 80, v7'); a.e('v_add_u32 v10, v10, v11'); a.e('v_lshl_add_u32 v10, v9, 4, v10'); a.e('v_add_u32 v%d, %d, v10' % (40+i, RT))
    def vo_load():
        for i in range(4): a.e('buffer_load_dwordx4 v[%d:%d], v%d, s[20:23], s46 offen' % (88+4*i, 91+4*i, 36+i))
    a.e('s_mov_b32 s46, 0'); vo_load()
    for i in range(5):
        a.e('v_add_u32 v6, %d, v0' % (256*i)); a.e('v_lshlrev_b32 v6, 1, v6')
        a.e('s_mov_b32 s44, 0x%x' % ((2**32 + 19)//20)); a.e('v_mul_hi_u32 v7, v6, s44'); a.e('v_mul_u32_u24 v8, 20, v7'); a.e('v_sub_u32 v8, v6, v8')
        a.e('v_and_b32 v9, 7, v7'); a.e('v_lshrrev_b32 v7, 3, v7')
        a.e('v_mul_u32_u24 v9, %d, v9' % RS); a.e('v_mul_u32_u24 v7, 80, v7'); a.e('v_add_u32 v9, v9, v7'); a.e('v_lshl_add_u32 v9, v8, 2, v9'); a.e('v_add_u32 v%d, %d, v9' % (44+i, PT))
    a.e('v_lshlrev_b32 v49, 4, v0')
    a.e('v_mul_u32_u24 v30, %d, v3' % HS); a.e('v_lshl_add_u32 v30, v4, 4, v30')
    a.e('v_mul_u32_u24 v31, %d, v3' % RS); a.e('v_lshl_add_u32 v31, v4, 4, v31')
    a.e('v_mul_u32_u24 v32, %d, v3' % RS); a.e('v_lshl_add_u32 v32, v4, 3, v32'); a.e('v_mul_u32_u24 v6, 320, v2'); a.e('v_add_u32 v32, v32, v6'); a.e('v_add_u32 v32, %d, v32' % (RT + 64))
    a.e('v_mul_u32_u24 v33, %d, v2' % (4*448)); a.e('v_add_u32 v33, v33, v3'); a.e('s_lshl_b32 s44, s47, 4'); a.e('v_add_u32 v33, s44, v33'); a.e('v_lshlrev_b32 v33, 4, v33'); a.e('v_lshl_add_u32 v33, v4, 3, v33')
    a.e('v_mul_u32_u24 v34, 224, v3'); a.e('v_lshl_add_u32 v34, v4, 1, v34'); a.e('s_lshl_b32 s44, s47, 3'); a.e('v_add_u32 v34, s44, v34'); a.e('v_lshlrev_b32 v34, 3, v34')
    a.e('s_mov_b32 s41, 0')
    a.lab(name + '_vloop')
    a.e('s_waitcnt vmcnt(0)')
    for i in range(4): a.e('ds_write_b128 v%d, v[%d:%d]' % (40+i, 88+4*i, 91+4*i))
    a.e('s_add_u32 s46, s46, 64'); a.e('s_min_u32 s46, s46, %d' % (63*64)); vo_load()
    get_mem(a, MB)
    a.e('s_waitcnt lgkmcnt(0)'); a.e('s_barrier')
    for r in range(16): a.e('v_mov_b32 v%d, 0' % (8+r))
    for half in range(2):
        for k in range(7): a.e('ds_read_b128 v[%d:%d], v30 offset:%d' % (60+4*k, 63+4*k, MB + (half*7+k)*64))
        for k in range(7):
            a.e('s_waitcnt lgkmcnt(%d)' % (6-k))
            for hh in range(4):
                a.e('v_mfma_f32_16x16x32_bf16 v[%d:%d], v[%d:%d], %s, v[%d:%d]' % (8+4*hh, 11+4*hh, 60+4*k, 63+4*k, wfrag(hh*14+half*7+k, 64), 8+4*hh, 11+4*hh))
    a.e('s_nop 7')
    for hh in range(4):
        a.e('v_cvt_pk_bf16_f32 v%d, v%d, v%d' % (8+4*hh, 8+4*hh, 9+4*hh)); a.e('v_cvt_pk_bf16_f32 v%d, v%d, v%d' % (9+4*hh, 10+4*hh, 11+4*hh))
    a.e('s_mul_i32 s44, s41, %d' % (16*448*16))
    a.e('s_mov_b32 exec_lo, -1'); a.e('s_mov_b32 exec_hi, 0')
    for hh in range(4):
        a.e('ds_write_b64 v32, v[%d:%d] offset:%d' % (8+4*hh, 9+4*hh, hh*80))
        a.e('buffer_store_dwordx2 v[%d:%d], v33, s[28:31], s44 offen offset:%d' % (8+4*hh, 9+4*hh, 0) if hh == 0 else
            'v_add_u32 v35, %d, v33\nbuffer_store_dwordx2 v[%d:%d], v35, s[28:31], s44 offen' % (hh*448*16, 8+4*hh, 9+4*hh))
    a.e('s_mov_b64 exec, -1')
    a.e('s_lshl_b32 s42, s41, 15')
    poll(a, 5, 49, 4096, 60, 16, 42, 4, [1, 3])
    for i in range(5):
        a.e('ds_write_b32 v%d, v%d' % (44+i, 60+4*i)); a.e('ds_write_b32 v%d, v%d offset:4' % (44+i, 62+4*i))
    a.e('s_waitcnt lgkmcnt(0)'); a.e('s_barrier')
    sk = a.uniq('vs')
    a.e('v_mul_u32_u24 v24, 320, v2'); a.e('v_add_u32 v24, v24, v31')
    for r in range(4): a.e('v_mov_b32 v%d, 0' % (8+r))
    for (k0, nk) in ((0, 3), (3, 2)):
        for k in range(nk):
            a.e('ds_read_b128 v[%d:%d], v24 offset:%d' % (60+8*k, 63+8*k, RT + (k0+k)*64))
            a.e('ds_read_b128 v[%d:%d], v24 offset:%d' % (64+8*k, 67+8*k, PT + (k0+k)*64))
        a.e('s_waitcnt lgkmcnt(0)')
        for k in range(nk):
            a.e('v_mfma_f32_16x16x32_bf16 v[8:11], v[%d:%d], v[%d:%d], v[8:11]' % (60+8*k, 63+8*k, 64+8*k, 67+8*k))
    a.e('s_nop 7'); a.e('s_nop 3')
    a.e('ds_write_b128 v49, v[8:11] offset:%d' % (PT + 16*RS))
    a.e('s_waitcnt lgkmcnt(0)'); a.e('s_barrier')
    a.e('s_cmp_lg_u32 s43, 0'); a.e('s_cbranch_scc1 %s' % sk)
    for w in range(1, 4): a.e('ds_read_b128 v[%d:%d], v49 offset:%d' % (8+4*w, 11+4*w, PT + 16*RS + w*1024))
    a.e('s_waitcnt lgkmcnt(0)')
    for r in range(4):
        a.e('v_add_f32 v%d, v%d, v%d' % (8+r, 8+r, 12+r)); a.e('v_add_f32 v%d, v%d, v%d' % (16+r, 16+r, 20+r)); a.e('v_add_f32 v%d, v%d, v%d' % (8+r, 8+r, 16+r))
    a.e('v_cvt_pk_bf16_f32 v12, v8, v9'); a.e('v_mov_b32 v13, 1'); a.e('v_cvt_pk_bf16_f32 v14, v10, v11'); a.e('v_mov_b32 v15, 1')
    a.e('s_add_u32 s42, s41, 1'); a.e('s_lshl_b32 s42, s42, 14')
    a.e('v_cmp_gt_u32 vcc, 8, v3'); a.e('s_and_b64 exec, exec, vcc')
    a.e('buffer_store_dwordx4 v[12:15], v34, s[12:15], s42 offen sc1')
    a.e('s_mov_b64 exec, -1')
    a.lab(sk)
    a.e('s_barrier')
    a.e('s_add_u32 s41, s41, 1'); a.e('s_cmp_lt_u32 s41, 64'); a.e('s_cbranch_scc1 %s_vloop' % name)
    a.lab(name + '_done')
    a.e('s_endpgm')
    g = extra()
    a.lab(name + '_done2')
    a.end(name, 256, 44 + g, 25*4096, na=256)


def final(a, name):
    a.begin(name)
    a.e('s_cmp_ge_u32 s2, 256'); a.e('s_cbranch_scc1 %s_done' % name)
    a.e('s_lshr_b32 s41, s2, 2'); a.e('s_and_b32 s47, s2, 3')
    a.srd(8, D_WS, XN, 2048*896); a.srd(12, D_WS, MBMEM, MBP - MBMEM); a.srd(24, A_MEM0)
    a.srd(16, D_WS, U, 2048*14336); a.srd(20, D_WS, VOT, 7168*4096); a.srd(28, D_WS, YB, 64*16*448*16)
    a.e('v_and_b32 v1, 63, v0'); a.e('v_lshrrev_b32 v2, 6, v0'); a.e('v_and_b32 v3, 15, v0'); a.e('v_bfe_u32 v4, v0, 4, 2')
    a.e('v_lshlrev_b32 v5, 4, v0')
    for i in range(4): a.e('v_mov_b32 v%d, 0' % (8+i))
    for i in range(3): a.e('ds_write_b128 v5, v[8:11] offset:%d' % (32*HS + i*4096))
    a.e('s_waitcnt lgkmcnt(0)'); a.e('s_barrier')
    a.e('s_mul_i32 s46, s41, %d' % (32*896))
    for i in range(7):
        a.e('v_add_u32 v6, %d, v0' % (256*i)); a.e('s_mov_b32 s44, 0x%x' % ((2**32 + 55)//56)); a.e('v_mul_hi_u32 v7, v6, s44')
        a.e('v_mul_u32_u24 v8, 56, v7'); a.e('v_sub_u32 v8, v6, v8'); a.e('v_mul_u32_u24 v7, %d, v7' % HS); a.e('v_lshl_add_u32 v9, v8, 4, v7')
        bop(a, 'buffer_load_dwordx4', 'v[12:15]', 5, 8, 46, i*4096); a.e('s_waitcnt vmcnt(0)'); a.e('ds_write_b128 v9, v[12:15]')
    a.e('v_lshlrev_b32 v50, 3, v0'); a.e('v_lshlrev_b32 v51, 2, v0'); a.e('s_lshl_b32 s42, s41, 14')
    for i in range(7):
        a.e('v_add_u32 v6, %d, v0' % (256*i)); a.e('s_mov_b32 s44, 0x%x' % ((2**32 + 223)//224)); a.e('v_mul_hi_u32 v7, v6, s44')
        a.e('v_mul_u32_u24 v8, 224, v7'); a.e('v_sub_u32 v8, v6, v8'); a.e('v_mul_u32_u24 v7, %d, v7' % HS); a.e('v_lshl_add_u32 v9, v8, 2, v7')
        L = a.uniq('fm')
        a.e('s_cmp_lg_u32 s41, 0'); a.e('s_cbranch_scc1 %s_a' % L)
        bop(a, 'buffer_load_dword', 'v12', 51, 24, None, i*1024); a.e('s_branch %s_b' % L)
        a.lab(L + '_a'); bop(a, 'buffer_load_dword', 'v12', 50, 12, 42, i*2048); a.lab(L + '_b')
        a.e('s_waitcnt vmcnt(0)'); a.e('ds_write_b32 v9, v12 offset:%d' % (32*HS))
    a.e('s_waitcnt lgkmcnt(0)'); a.e('s_barrier')
    a.e('v_mul_u32_u24 v40, %d, v3' % HS); a.e('v_lshl_add_u32 v40, v4, 4, v40')
    a.e('s_lshl_b32 s44, s41, 5'); a.e('v_add_u32 v41, s44, v3'); a.e('s_mov_b32 s45, 14336'); a.e('v_mul_lo_u32 v41, v41, s45'); a.e('v_lshl_add_u32 v41, v4, 4, v41')
    a.e('v_mul_u32_u24 v6, 3584, v2'); a.e('v_add_u32 v41, v41, v6')
    a.e('s_mul_i32 s44, s47, 112'); a.e('v_mul_u32_u24 v42, 1792, v2'); a.e('v_add_u32 v42, v42, v3'); a.e('v_add_u32 v42, s44, v42'); a.e('v_mov_b32 v43, v42')
    a.e('v_lshlrev_b32 v42, 12, v42'); a.e('v_lshl_add_u32 v42, v4, 3, v42'); a.e('s_lshl_b32 s44, s41, 6'); a.e('v_add_u32 v42, s44, v42')
    a.e('v_lshlrev_b32 v43, 4, v43'); a.e('v_lshl_add_u32 v43, v4, 3, v43'); a.e('s_mul_i32 s44, s41, 114688'); a.e('v_add_u32 v43, s44, v43')
    a.e('v_cmp_lt_u32 vcc, 1, v4'); a.e('v_mov_b32 v6, 0x7f000000'); a.e('s_nop 1'); a.e('v_cndmask_b32 v44, 0, v6, vcc'); a.e('v_add_u32 v43, v43, v44')
    OA = 128
    for r in range(56): a.e('v_mov_b32 v%d, 0' % (OA + r))
    a.e('v_mov_b32 v118, 0xff800000')
    for hh in range(4):
        for r in range(24): a.e('v_mov_b32 v%d, 0' % (8 + r))
        for half in range(2):
            for k in range(7):
                for qt in range(2):
                    a.e('s_mov_b32 s45, %d' % (qt*16*14336 + hh*896))
                    ur = 184 + (k*2+qt)*4
                    a.e('buffer_load_dwordx4 v[%d:%d], v41, s[16:19], s45 offen offset:%d' % (ur, ur+3, (half*7+k)*64))
            for k in range(7):
                for kt in range(3): a.e('ds_read_b128 v[%d:%d], v40 offset:%d' % (68+4*kt, 71+4*kt, kt*16*HS + (half*7+k)*64))
                a.e('s_waitcnt vmcnt(%d) lgkmcnt(0)' % (12 - 2*k))
                for kt in range(3):
                    for qt in range(2):
                        c = 8 + (kt*2+qt)*4; ur = 184 + (k*2+qt)*4
                        a.e('v_mfma_f32_16x16x32_bf16 v[%d:%d], v[%d:%d], v[%d:%d], v[%d:%d]' % (c, c+3, 68+4*kt, 71+4*kt, ur, ur+3, c, c+3))
        for jt in range(7):
            rb = 184 + 8*jt
            a.e('s_mov_b32 s45, %d' % ((hh*448 + jt*16)*4096))
            a.e('buffer_load_dwordx2 v[%d:%d], v42, s[20:23], s45 offen' % (rb, rb+1)); a.e('buffer_load_dwordx2 v[%d:%d], v42, s[20:23], s45 offen offset:32' % (rb+2, rb+3))
            a.e('s_mov_b32 s45, %d' % ((hh*448 + jt*16)*16))
            a.e('buffer_load_dwordx2 v[%d:%d], v43, s[28:31], s45 offen' % (rb+4, rb+5))
            a.e('v_mov_b32 v%d, 0' % (rb+6)); a.e('v_mov_b32 v%d, 0' % (rb+7))
        a.e('s_nop 7')
        for qt in range(2):
            for kt in range(3):
                for r in range(4):
                    c = 8 + (kt*2+qt)*4 + r
                    if kt < 2:
                        a.e('v_lshl_add_u32 v6, v4, 2, %d' % (16*kt + r)); a.e('v_add_u32 v7, %d, v3' % (16*qt)); a.e('v_cmp_le_u32 vcc, v6, v7')
                    else:
                        a.e('v_cmp_gt_u32 vcc, 2, v4')
                    a.e('s_nop 1'); a.e('v_cndmask_b32 v%d, v118, v%d, vcc' % (c, c))
            regs = [8 + (kt*2+qt)*4 + r for kt in range(3) for r in range(4)]
            a.e('v_max_f32 v32, v%d, v%d' % (regs[0], regs[1]))
            for x in regs[2:]: a.e('v_max_f32 v32, v32, v%d' % x)
            def red(op):
                for m in (16, 32):
                    a.e('v_xor_b32 v33, %d, v1' % m); a.e('v_lshlrev_b32 v33, 2, v33'); a.e('ds_bpermute_b32 v34, v33, v32'); a.e('s_waitcnt lgkmcnt(0)'); a.e('%s v32, v32, v34' % op)
            red('v_max_f32')
            for x in regs:
                a.e('v_sub_f32 v%d, v%d, v32' % (x, x)); a.e('v_mul_f32 v%d, 0x3fb8aa3b, v%d' % (x, x)); a.e('v_exp_f32 v%d, v%d' % (x, x))
            a.e('s_nop 0'); a.e('v_add_f32 v32, v%d, v%d' % (regs[0], regs[1]))
            for x in regs[2:]: a.e('v_add_f32 v32, v32, v%d' % x)
            red('v_add_f32')
            a.e('v_rcp_f32 v32, v32'); a.e('s_nop 0')
            for x in regs: a.e('v_mul_f32 v%d, v%d, v32' % (x, x))
            pb = 80 + 8*qt
            for kt in range(3):
                c = 8 + (kt*2+qt)*4
                a.e('v_cvt_pk_bf16_f32 v%d, v%d, v%d' % (pb+2*kt, c, c+1)); a.e('v_cvt_pk_bf16_f32 v%d, v%d, v%d' % (pb+2*kt+1, c+2, c+3))
            a.e('v_mov_b32 v%d, 0' % (pb+6)); a.e('v_mov_b32 v%d, 0' % (pb+7))
        a.e('s_waitcnt vmcnt(0)')
        for jt in range(7):
            rb = 184 + 8*jt
            for qt in range(2):
                c = OA + (jt*2+qt)*4; pb = 80 + 8*qt
                a.e('v_mfma_f32_16x16x32_bf16 v[%d:%d], v[%d:%d], v[%d:%d], v[%d:%d]' % (c, c+3, rb, rb+3, pb, pb+3, c, c+3))
                a.e('v_mfma_f32_16x16x32_bf16 v[%d:%d], v[%d:%d], v[%d:%d], v[%d:%d]' % (c, c+3, rb+4, rb+7, pb+4, pb+7, c, c+3))
    a.e('s_nop 7'); a.e('s_nop 3'); a.e('s_barrier')
    QS = 464
    a.e('v_mul_u32_u24 v5, %d, v2' % (32*QS)); a.e('v_mul_u32_u24 v6, %d, v3' % QS); a.e('v_add_u32 v5, v5, v6'); a.e('v_lshl_add_u32 v5, v4, 4, v5')
    for jt in range(7):
        for qt in range(2):
            c = OA + (jt*2+qt)*4
            a.e('ds_write_b128 v5, v[%d:%d] offset:%d' % (c, c+3, qt*16*QS + jt*64))
    a.e('s_waitcnt lgkmcnt(0)'); a.e('s_barrier')
    a.srd(8, A_X); a.srd(12, D_WS, BO, 2048*896); a.srd(16, D_OUT)
    for it in range(4):
        a.e('v_add_u32 v6, %d, v0' % (256*it)); a.e('s_mov_b32 s44, 0x%x' % ((2**32 + 27)//28)); a.e('v_mul_hi_u32 v7, v6, s44')
        a.e('v_mul_u32_u24 v8, 28, v7'); a.e('v_sub_u32 v8, v6, v8')
        a.e('v_cmp_gt_u32 vcc, 896, v6'); a.e('s_mov_b64 s[36:37], exec'); a.e('s_and_b64 exec, exec, vcc')
        a.e('v_mul_u32_u24 v9, %d, v7' % QS); a.e('v_lshl_add_u32 v9, v8, 4, v9')
        for w in range(4): a.e('ds_read_b128 v[%d:%d], v9 offset:%d' % (12+4*w, 15+4*w, w*32*QS))
        a.e('s_lshl_b32 s44, s41, 5'); a.e('v_add_u32 v10, s44, v7'); a.e('v_mul_u32_u24 v10, 896, v10'); a.e('v_lshl_add_u32 v10, v8, 3, v10'); a.e('s_mul_i32 s44, s47, 224'); a.e('v_add_u32 v10, s44, v10')
        a.e('buffer_load_dwordx2 v[30:31], v10, s[8:11], 0 offen'); a.e('buffer_load_dwordx2 v[32:33], v10, s[12:15], 0 offen')
        a.e('s_waitcnt vmcnt(0) lgkmcnt(0)')
        for r in range(4):
            a.e('v_add_f32 v%d, v%d, v%d' % (12+r, 12+r, 16+r)); a.e('v_add_f32 v%d, v%d, v%d' % (20+r, 20+r, 24+r)); a.e('v_add_f32 v%d, v%d, v%d' % (12+r, 12+r, 20+r))
        def unpack(dst, src):
            for r in range(4):
                if r & 1: a.e('v_and_b32 v%d, 0xffff0000, v%d' % (dst+r, src+(r>>1)))
                else: a.e('v_lshlrev_b32 v%d, 16, v%d' % (dst+r, src+(r>>1)))
        def rnd():
            a.e('v_cvt_pk_bf16_f32 v34, v12, v13'); a.e('v_cvt_pk_bf16_f32 v35, v14, v15')
        rnd(); unpack(12, 34); unpack(16, 30)
        for r in range(4): a.e('v_add_f32 v%d, v%d, v%d' % (12+r, 12+r, 16+r))
        rnd(); unpack(12, 34); unpack(16, 32)
        for r in range(4): a.e('v_add_f32 v%d, v%d, v%d' % (12+r, 12+r, 16+r))
        rnd()
        a.e('buffer_store_dwordx2 v[34:35], v10, s[16:19], 0 offen')
        a.e('s_mov_b64 exec, s[36:37]')
    a.lab(name + '_done')
    a.end(name, 240, 256, 4*32*464)
```

```python
from lib import *
from prep import prep
import sys
hdr = open('parallel_sum__memory_aug_recurrent_mem_tr__dense_activation_gelu__prompt.s.ref').read().split('; @launch')[0]
a = Asm()
prep(a, 'prep_kernel')
a.begin('g1_kernel')
g = gemm(a, 'y_f1', (D_WS, W1T, 896, 0), (D_WS, XN, 896, 0), (D_WS, H1, 3584, 0), 1792, 2048, 448, 1, 128, 128, epi='gelu', bias=(B_B1,), embed=(0, 'y_at'))
g2 = gemm(a, 'y_at', (A_WQ, 0, 8192, 512), (A_WK, 0, 8192, 512), (D_WS, AT, 896, 448*896), 448, 448, 256, 16, 64, 64, epi='scale', embed=(g, 'y_wv'))
g3 = gemm(a, 'y_wv', (A_WV, 0, 8192, 512), (D_WS, WOT, 512, 448*512), (D_WS, WVT, 896, 448*896), 448, 448, 256, 16, 64, 64, embed=(g2, 'y_end'))
a.lab('y_end')
a.end('g1_kernel', 132, g+g2+g3, 73728)
gemm(a, 'gvo_kernel', (D_WS, XN, 896, 0), (D_WS, WVT, 896, 0), (D_WS, VOT, 4096, 0), 2048, 7168, 448, 1, 128, 128)
def extra():
    g = gemm(a, 'x_gf2', (D_WS, W2T, 3584, 0), (D_WS, H1, 3584, 0), (D_WS, BO, 896, 0), 448, 2048, 1792, 1, 64, 64, bias=(B_B2,), embed=(44, 'x_gu'))
    g += gemm(a, 'x_gu', (D_WS, AT, 896, 0), (D_WS, XN, 896, 0), (D_WS, U, 7168*2, 0), 7168, 2048, 448, 1, 128, 128, embed=(g, 'chain_kernel_done2'))
    return g
try:
    from chain import chain, final
    chain(a, 'chain_kernel', extra); final(a, KNAME)
except ImportError:
    pass
open('parallel_sum__memory_aug_recurrent_mem_tr__dense_activation_gelu__prompt.s', 'w').write(a.text(hdr))
```

```python
from lib import *
HS = 912
def bop(a, op, regs, va, srd, sb, off, fl=''):
    if off >= 4096:
        a.e('s_add_u32 s39, %s, %d' % ('s%d' % sb if sb is not None else '0', off & ~4095)); sb = 39; off &= 4095
    a.e('%s %s, v%d, s[%d:%d], %s offen offset:%d %s' % (op, regs, va, srd, srd+3, 's%d' % sb if sb is not None else '0', off, fl))
def poll(a, nload, vaddr0, step_bytes, dst, srd, soff, width, tagpos):
    L = a.uniq('poll')
    a.e('s_mov_b32 s40, 0')
    a.lab(L)
    for i in range(nload):
        bop(a, 'buffer_load_dwordx%d' % width, 'v[%d:%d]' % (dst+width*i, dst+width*i+width-1), vaddr0, srd, soff, i*step_bytes, 'sc1')
    a.e('s_waitcnt vmcnt(0)')
    first = True
    for i in range(nload):
        for t in tagpos:
            r = dst + width*i + t
            if first: a.e('v_mov_b32 v119, v%d' % r); first = False
            else: a.e('v_and_b32 v119, v119, v%d' % r)
    a.e('v_cmp_ne_u32 vcc, 1, v119')
    a.e('s_add_u32 s40, s40, 1')
    a.e('s_cmp_gt_u32 s40, 0x100000')
    a.e('s_cbranch_scc1 %s_x' % L)
    a.e('s_cbranch_vccz %s_x' % L)
    a.e('s_sleep 4')
    a.e('s_branch %s' % L)
    a.lab(L + '_x')

def wfrag(idx, na):
    if idx < na: return 'a[%d:%d]' % (4*idx, 4*idx+3)
    r = 120 + 4*(idx - na); return 'v[%d:%d]' % (r, r+3)

def get_mem(a, ldsoff):
    L = a.uniq('gm')
    a.e('s_cmp_lg_u32 s41, 0'); a.e('s_cbranch_scc1 %s_p' % L)
    for i in range(7):
        bop(a, 'buffer_load_dword', 'v%d' % (60+2*i), 51, 24, None, i*1024)
    a.e('s_waitcnt vmcnt(0)')
    a.e('s_branch %s_w' % L)
    a.lab(L + '_p')
    a.e('s_lshl_b32 s42, s41, 14')
    poll(a, 7, 50, 2048, 60, 12, 42, 2, [1])
    a.lab(L + '_w')
    for i in range(7): a.e('ds_write_b32 v%d, v%d offset:%d' % (52+i, 60+2*i, ldsoff))

def chain(a, name, extra):
    a.begin(name)
    a.e('s_cmp_ge_u32 s2, 44'); a.e('s_cbranch_scc1 x_gvo')
    a.srd(12, D_WS, MBMEM, MBP - MBMEM); a.srd(16, D_WS, MBP, MB_END - MBP); a.srd(24, A_MEM0)
    a.e('v_lshlrev_b32 v50, 3, v0'); a.e('v_lshlrev_b32 v51, 2, v0')
    a.e('v_and_b32 v1, 63, v0'); a.e('v_lshrrev_b32 v2, 6, v0'); a.e('v_and_b32 v3, 15, v0'); a.e('v_bfe_u32 v4, v0, 4, 2')
    a.e('s_nop 0'); a.e('v_readfirstlane_b32 s43, v2')
    a.e('v_lshlrev_b32 v5, 4, v0')
    for i in range(4): a.e('v_mov_b32 v%d, 0' % (8+i))
    for i in range(16): a.e('ds_write_b128 v5, v[8:11] offset:%d' % (i*4096))
    a.e('v_add_u32 v5, 0x10000, v5')
    for i in range(9): a.e('ds_write_b128 v5, v[8:11] offset:%d' % (i*4096))
    a.e('s_waitcnt lgkmcnt(0)'); a.e('s_barrier')
    for i in range(7):
        a.e('v_add_u32 v6, %d, v0' % (256*i)); a.e('s_mov_b32 s44, 0x%x' % ((2**32 + 223)//224)); a.e('v_mul_hi_u32 v7, v6, s44')
        a.e('v_mul_u32_u24 v8, 224, v7'); a.e('v_sub_u32 v8, v6, v8'); a.e('v_mul_u32_u24 v7, %d, v7' % HS); a.e('v_lshl_add_u32 v%d, v8, 2, v7' % (52+i))
    a.e('s_cmp_ge_u32 s2, 16'); a.e('s_cbranch_scc1 %s_val' % name)
    HB = [0, 48*HS]; RED = 2*48*HS
    a.srd(8, D_WS, AT, 16*448*896); a.srd(20, D_WS, XN, 2048*896)
    a.e('s_mul_i32 s44, s2, %d' % (448*896)); a.e('s_mul_i32 s45, s43, %d' % (112*896)); a.e('s_add_u32 s44, s44, s45')
    a.e('v_mul_u32_u24 v6, 896, v3'); a.e('v_lshl_add_u32 v6, v4, 4, v6'); a.e('v_add_u32 v6, s44, v6')
    for t in range(7):
        for ks in range(14):
            a.e('buffer_load_dwordx4 %s, v6, s[8:11], 0 offen offset:%d' % (wfrag(t*14+ks, 64), ks*64))
        a.e('v_add_u32 v6, %d, v6' % (16*896))
    for i in range(7): a.e('v_add_u32 v%d, %d, v%d' % (52+i, 32*HS, 52+i))
    XA = [36, 37, 38, 39, 47, 48, 59]
    for i in range(7):
        a.e('v_add_u32 v6, %d, v0' % (256*i)); a.e('s_mov_b32 s44, 0x%x' % ((2**32 + 55)//56)); a.e('v_mul_hi_u32 v7, v6, s44')
        a.e('v_mul_u32_u24 v8, 56, v7'); a.e('v_sub_u32 v8, v6, v8'); a.e('v_mul_u32_u24 v7, %d, v7' % HS); a.e('v_lshl_add_u32 v%d, v8, 4, v7' % XA[i])
    a.e('v_lshlrev_b32 v49, 4, v0')
    def xs_load():
        for i in range(7): bop(a, 'buffer_load_dwordx4', 'v[%d:%d]' % (88+4*i, 91+4*i), 49, 20, 46, i*4096)
    def xs_store(buf):
        for i in range(7): a.e('ds_write_b128 v%d, v[%d:%d] offset:%d' % (XA[i], 88+4*i, 91+4*i, HB[buf]))
    a.e('s_mov_b32 s46, 0'); xs_load(); a.e('s_waitcnt vmcnt(0)'); xs_store(0)
    a.e('s_mov_b32 s46, %d' % (32*896)); xs_load()
    a.e('v_add_u32 v40, 32, v3'); a.e('v_mul_u32_u24 v40, %d, v40' % HS); a.e('v_lshl_add_u32 v40, v4, 4, v40')
    a.e('v_mul_u32_u24 v41, %d, v3' % HS); a.e('v_lshl_add_u32 v41, v4, 3, v41'); a.e('v_mul_u32_u24 v6, 224, v2'); a.e('v_add_u32 v41, v41, v6')
    a.e('v_lshlrev_b32 v42, 2, v2'); a.e('v_lshl_add_u32 v42, v4, 10, v42'); a.e('v_lshl_add_u32 v42, v3, 4, v42'); a.e('v_add_u32 v42, %d, v42' % RED)
    a.e('v_and_b32 v43, 7, v1'); a.e('v_bfe_u32 v44, v1, 3, 2'); a.e('v_mul_u32_u24 v45, 2560, v44'); a.e('v_lshl_add_u32 v45, v43, 4, v45'); a.e('v_add_u32 v45, %d, v45' % RED)
    a.e('v_mul_u32_u24 v46, 20, v43'); a.e('v_mul_u32_u24 v6, 5, v44'); a.e('v_add_u32 v46, v46, v6'); a.e('s_mul_i32 s44, s2, 160'); a.e('v_add_u32 v46, s44, v46'); a.e('v_lshlrev_b32 v46, 3, v46')
    a.e('s_mov_b32 s41, 0')
    a.lab(name + '_sloop')
    for par in range(2):
        hb = HB[par]
        get_mem(a, hb)
        a.e('s_waitcnt lgkmcnt(0)'); a.e('s_barrier')
        for r in range(28): a.e('v_mov_b32 v%d, 0' % (8+r))
        for half in range(2):
            for k in range(7): a.e('ds_read_b128 v[%d:%d], v40 offset:%d' % (60+4*k, 63+4*k, hb + (half*7+k)*64))
            for k in range(7):
                a.e('s_waitcnt lgkmcnt(%d)' % (6-k))
                for t in range(7):
                    a.e('v_mfma_f32_16x16x32_bf16 v[%d:%d], %s, v[%d:%d], v[%d:%d]' % (8+4*t, 11+4*t, wfrag(t*14+half*7+k, 64), 60+4*k, 63+4*k, 8+4*t, 11+4*t))
        a.e('s_nop 7')
        for t in range(7):
            a.e('v_cvt_pk_bf16_f32 v%d, v%d, v%d' % (8+4*t, 8+4*t, 9+4*t)); a.e('v_cvt_pk_bf16_f32 v%d, v%d, v%d' % (9+4*t, 10+4*t, 11+4*t))
        for q in range(4):
            if q < 3:
                a.e('v_mov_b32 v%d, v%d' % (10+8*q, 12+8*q)); a.e('v_mov_b32 v%d, v%d' % (11+8*q, 13+8*q))
            else:
                a.e('v_mov_b32 v%d, 0' % (10+8*q)); a.e('v_mov_b32 v%d, 0' % (11+8*q))
        for r in range(12): a.e('v_mov_b32 v%d, 0' % (76+r))
        a.e('v_add_u32 v41, %d, v41' % hb)
        for kt in range(3):
            for q in range(4):
                r = 60 + 4*q
                a.e('ds_read_b64 v[%d:%d], v41 offset:%d' % (r, r+1, kt*16*HS + q*64))
                a.e('ds_read_b64 v[%d:%d], v41 offset:%d' % (r+2, r+3, kt*16*HS + q*64 + 32))
            a.e('s_waitcnt lgkmcnt(0)')
            for q in range(4):
                r = 60 + 4*q
                a.e('v_mfma_f32_16x16x32_bf16 v[%d:%d], v[%d:%d], v[%d:%d], v[%d:%d]' % (76+4*kt, 79+4*kt, r, r+3, 8+8*q, 11+8*q, 76+4*kt, 79+4*kt))
        a.e('v_subrev_u32 v41, %d, v41' % hb); a.e('s_nop 7'); a.e('s_nop 3')
        for kt in range(3):
            for r in range(4): a.e('ds_write_b32 v42, v%d offset:%d' % (76+4*kt+r, kt*4096 + r*256))
        a.e('s_waitcnt lgkmcnt(0)'); a.e('s_barrier')
        sk = a.uniq('sk')
        a.e('s_cmp_lg_u32 s43, 0'); a.e('s_cbranch_scc1 %s' % sk)
        for k in range(10): a.e('ds_read_b128 v[%d:%d], v45 offset:%d' % (((60+4*k, 63+4*k) if k < 7 else (24+4*(k-7), 27+4*(k-7))) + (k*256,)))
        for k in range(10):
            b = 60+4*k if k < 7 else 24+4*(k-7)
            a.e('s_waitcnt lgkmcnt(%d)' % (9-k))
            a.e('v_add_f32 v%d, v%d, v%d' % (b, b, b+1)); a.e('v_add_f32 v%d, v%d, v%d' % (b+2, b+2, b+3)); a.e('v_add_f32 v%d, v%d, v%d' % (8+k, b, b+2))
        a.e('v_max_f32 v20, v8, v9')
        for k in range(2, 10): a.e('v_max_f32 v20, v20, v%d' % (8+k))
        def red(op):
            for m in (8, 16):
                a.e('v_xor_b32 v21, %d, v1' % m); a.e('v_lshlrev_b32 v21, 2, v21'); a.e('ds_bpermute_b32 v22, v21, v20'); a.e('s_waitcnt lgkmcnt(0)'); a.e('%s v20, v20, v22' % op)
        red('v_max_f32')
        for k in range(10):
            a.e('v_sub_f32 v%d, v%d, v20' % (8+k, 8+k)); a.e('v_mul_f32 v%d, 0x3fb8aa3b, v%d' % (8+k, 8+k)); a.e('v_exp_f32 v%d, v%d' % (8+k, 8+k))
        a.e('s_nop 0'); a.e('v_add_f32 v20, v8, v9')
        for k in range(2, 10): a.e('v_add_f32 v20, v20, v%d' % (8+k))
        red('v_add_f32')
        a.e('v_rcp_f32 v20, v20'); a.e('s_nop 0')
        for k in range(10): a.e('v_mul_f32 v%d, v%d, v20' % (8+k, 8+k))
        for k in range(5):
            a.e('v_cvt_pk_bf16_f32 v%d, v%d, v%d' % (24+2*k, 8+2*k, 9+2*k)); a.e('v_mov_b32 v%d, 1' % (25+2*k))
        a.e('s_lshl_b32 s42, s41, 15')
        a.e('s_mov_b32 exec_lo, -1'); a.e('s_mov_b32 exec_hi, 0')
        for k in range(5): a.e('buffer_store_dwordx2 v[%d:%d], v46, s[16:19], s42 offen offset:%d sc1' % (24+2*k, 25+2*k, k*8))
        a.e('s_mov_b64 exec, -1')
        a.lab(sk)
        a.e('s_waitcnt vmcnt(0)')
        xs_store(par ^ 1)
        a.e('s_add_u32 s46, s46, %d' % (32*896)); xs_load()
        a.e('s_add_u32 s41, s41, 1')
    a.e('s_cmp_lt_u32 s41, 64'); a.e('s_cbranch_scc1 %s_sloop' % name)
    a.e('s_branch %s_done' % name)
    a.lab(name + '_val')
    MB = 0; RS = 1296; RT = 16*HS; PT = RT + 16*RS
    a.srd(8, D_WS, WVT, 16*448*896); a.srd(20, D_WS, VOT, 7168*4096); a.srd(28, D_WS, YB, 64*16*448*16)
    a.e('s_sub_u32 s47, s2, 16')
    a.e('s_mul_i32 s44, s43, %d' % (4*448*896)); a.e('s_mul_i32 s45, s47, %d' % (16*896)); a.e('s_add_u32 s44, s44, s45')
    a.e('v_mul_u32_u24 v6, 896, v3'); a.e('v_lshl_add_u32 v6, v4, 4, v6'); a.e('v_add_u32 v6, s44, v6')
    for hh in range(4):
        for ks in range(14):
            a.e('buffer_load_dwordx4 %s, v6, s[8:11], 0 offen offset:%d' % (wfrag(hh*14+ks, 64), ks*64))
        a.e('v_add_u32 v6, %d, v6' % (448*896))
    for i in range(4):
        a.e('v_add_u32 v6, %d, v0' % (256*i)); a.e('v_lshrrev_b32 v7, 6, v6'); a.e('v_bfe_u32 v8, v6, 2, 4'); a.e('v_and_b32 v9, 3, v6')
        a.e('v_mul_u32_u24 v10, 448, v7'); a.e('v_add_u32 v10, v10, v8'); a.e('s_lshl_b32 s44, s47, 4'); a.e('v_add_u32 v10, s44, v10')
        a.e('v_lshlrev_b32 v10, 12, v10'); a.e('v_lshl_add_u32 v%d, v9, 4, v10' % (36+i))
        a.e('v_mul_u32_u24 v10, %d, v8' % RS); a.e('v_mul_u32_u24 v11, 80, v7'); a.e('v_add_u32 v10, v10, v11'); a.e('v_lshl_add_u32 v10, v9, 4, v10'); a.e('v_add_u32 v%d, %d, v10' % (40+i, RT))
    a.srd(32, D_DBG)
    def vo_load():
        L = a.uniq('vw')
        a.e('s_and_b32 s44, s46, 255'); a.e('s_cmp_lg_u32 s44, 0'); a.e('s_cbranch_scc1 %s_go' % L)
        a.e('s_lshr_b32 s44, s46, 6'); a.e('v_mov_b32 v6, s44'); a.e('s_mov_b32 s40, 0')
        a.lab(L)
        a.e('buffer_load_dword v7, v6, s[32:35], 0 offen sc1'); a.e('s_waitcnt vmcnt(0)')
        a.e('v_cmp_ne_u32 vcc, 56, v7'); a.e('s_add_u32 s40, s40, 1'); a.e('s_cmp_gt_u32 s40, 0x100000'); a.e('s_cbranch_scc1 %s_go' % L)
        a.e('s_cbranch_vccnz %s' % L)
        a.lab(L + '_go')
        for i in range(4): a.e('buffer_load_dwordx4 v[%d:%d], v%d, s[20:23], s46 offen sc1' % (88+4*i, 91+4*i, 36+i))
    a.e('s_mov_b32 s46, 0'); vo_load()
    for i in range(5):
        a.e('v_add_u32 v6, %d, v0' % (256*i)); a.e('v_lshlrev_b32 v6, 1, v6')
        a.e('s_mov_b32 s44, 0x%x' % ((2**32 + 19)//20)); a.e('v_mul_hi_u32 v7, v6, s44'); a.e('v_mul_u32_u24 v8, 20, v7'); a.e('v_sub_u32 v8, v6, v8')
        a.e('v_and_b32 v9, 7, v7'); a.e('v_lshrrev_b32 v7, 3, v7')
        a.e('v_mul_u32_u24 v9, %d, v9' % RS); a.e('v_mul_u32_u24 v7, 80, v7'); a.e('v_add_u32 v9, v9, v7'); a.e('v_lshl_add_u32 v9, v8, 2, v9'); a.e('v_add_u32 v%d, %d, v9' % (44+i, PT))
    a.e('v_lshlrev_b32 v49, 4, v0')
    a.e('v_mul_u32_u24 v30, %d, v3' % HS); a.e('v_lshl_add_u32 v30, v4, 4, v30')
    a.e('v_mul_u32_u24 v31, %d, v3' % RS); a.e('v_lshl_add_u32 v31, v4, 4, v31')
    a.e('v_mul_u32_u24 v32, %d, v3' % RS); a.e('v_lshl_add_u32 v32, v4, 3, v32'); a.e('v_mul_u32_u24 v6, 320, v2'); a.e('v_add_u32 v32, v32, v6'); a.e('v_add_u32 v32, %d, v32' % (RT + 64))
    a.e('v_mul_u32_u24 v33, %d, v2' % (4*448)); a.e('v_add_u32 v33, v33, v3'); a.e('s_lshl_b32 s44, s47, 4'); a.e('v_add_u32 v33, s44, v33'); a.e('v_lshlrev_b32 v33, 4, v33'); a.e('v_lshl_add_u32 v33, v4, 3, v33')
    a.e('v_mul_u32_u24 v34, 224, v3'); a.e('v_lshl_add_u32 v34, v4, 1, v34'); a.e('s_lshl_b32 s44, s47, 3'); a.e('v_add_u32 v34, s44, v34'); a.e('v_lshlrev_b32 v34, 3, v34')
    a.e('s_mov_b32 s41, 0')
    a.lab(name + '_vloop')
    a.e('s_waitcnt vmcnt(0)')
    for i in range(4): a.e('ds_write_b128 v%d, v[%d:%d]' % (40+i, 88+4*i, 91+4*i))
    a.e('s_add_u32 s46, s46, 64'); a.e('s_min_u32 s46, s46, %d' % (63*64)); vo_load()
    get_mem(a, MB)
    a.e('s_waitcnt lgkmcnt(0)'); a.e('s_barrier')
    for r in range(16): a.e('v_mov_b32 v%d, 0' % (8+r))
    for half in range(2):
        for k in range(7): a.e('ds_read_b128 v[%d:%d], v30 offset:%d' % (60+4*k, 63+4*k, MB + (half*7+k)*64))
        for k in range(7):
            a.e('s_waitcnt lgkmcnt(%d)' % (6-k))
            for hh in range(4):
                a.e('v_mfma_f32_16x16x32_bf16 v[%d:%d], v[%d:%d], %s, v[%d:%d]' % (8+4*hh, 11+4*hh, 60+4*k, 63+4*k, wfrag(hh*14+half*7+k, 64), 8+4*hh, 11+4*hh))
    a.e('s_nop 7')
    for hh in range(4):
        a.e('v_cvt_pk_bf16_f32 v%d, v%d, v%d' % (8+4*hh, 8+4*hh, 9+4*hh)); a.e('v_cvt_pk_bf16_f32 v%d, v%d, v%d' % (9+4*hh, 10+4*hh, 11+4*hh))
    a.e('s_mul_i32 s44, s41, %d' % (16*448*16))
    a.e('s_mov_b32 exec_lo, -1'); a.e('s_mov_b32 exec_hi, 0')
    for hh in range(4):
        a.e('ds_write_b64 v32, v[%d:%d] offset:%d' % (8+4*hh, 9+4*hh, hh*80))
        a.e('buffer_store_dwordx2 v[%d:%d], v33, s[28:31], s44 offen offset:%d' % (8+4*hh, 9+4*hh, 0) if hh == 0 else
            'v_add_u32 v35, %d, v33\nbuffer_store_dwordx2 v[%d:%d], v35, s[28:31], s44 offen' % (hh*448*16, 8+4*hh, 9+4*hh))
    a.e('s_mov_b64 exec, -1')
    a.e('s_lshl_b32 s42, s41, 15')
    poll(a, 5, 49, 4096, 60, 16, 42, 4, [1, 3])
    for i in range(5):
        a.e('ds_write_b32 v%d, v%d' % (44+i, 60+4*i)); a.e('ds_write_b32 v%d, v%d offset:4' % (44+i, 62+4*i))
    a.e('s_waitcnt lgkmcnt(0)'); a.e('s_barrier')
    sk = a.uniq('vs')
    a.e('v_mul_u32_u24 v24, 320, v2'); a.e('v_add_u32 v24, v24, v31')
    for r in range(4): a.e('v_mov_b32 v%d, 0' % (8+r))
    for (k0, nk) in ((0, 3), (3, 2)):
        for k in range(nk):
            a.e('ds_read_b128 v[%d:%d], v24 offset:%d' % (60+8*k, 63+8*k, RT + (k0+k)*64))
            a.e('ds_read_b128 v[%d:%d], v24 offset:%d' % (64+8*k, 67+8*k, PT + (k0+k)*64))
        a.e('s_waitcnt lgkmcnt(0)')
        for k in range(nk):
            a.e('v_mfma_f32_16x16x32_bf16 v[8:11], v[%d:%d], v[%d:%d], v[8:11]' % (60+8*k, 63+8*k, 64+8*k, 67+8*k))
    a.e('s_nop 7'); a.e('s_nop 3')
    a.e('ds_write_b128 v49, v[8:11] offset:%d' % (PT + 16*RS))
    a.e('s_waitcnt lgkmcnt(0)'); a.e('s_barrier')
    a.e('s_cmp_lg_u32 s43, 0'); a.e('s_cbranch_scc1 %s' % sk)
    for w in range(1, 4): a.e('ds_read_b128 v[%d:%d], v49 offset:%d' % (8+4*w, 11+4*w, PT + 16*RS + w*1024))
    a.e('s_waitcnt lgkmcnt(0)')
    for r in range(4):
        a.e('v_add_f32 v%d, v%d, v%d' % (8+r, 8+r, 12+r)); a.e('v_add_f32 v%d, v%d, v%d' % (16+r, 16+r, 20+r)); a.e('v_add_f32 v%d, v%d, v%d' % (8+r, 8+r, 16+r))
    a.e('v_cvt_pk_bf16_f32 v12, v8, v9'); a.e('v_mov_b32 v13, 1'); a.e('v_cvt_pk_bf16_f32 v14, v10, v11'); a.e('v_mov_b32 v15, 1')
    a.e('s_add_u32 s42, s41, 1'); a.e('s_lshl_b32 s42, s42, 14')
    a.e('v_cmp_gt_u32 vcc, 8, v3'); a.e('s_and_b64 exec, exec, vcc')
    a.e('buffer_store_dwordx4 v[12:15], v34, s[12:15], s42 offen sc1')
    a.e('s_mov_b64 exec, -1')
    a.lab(sk)
    a.e('s_barrier')
    a.e('s_add_u32 s41, s41, 1'); a.e('s_cmp_lt_u32 s41, 64'); a.e('s_cbranch_scc1 %s_vloop' % name)
    a.lab(name + '_done')
    a.e('s_endpgm')
    g = extra()
    a.lab(name + '_done2')
    a.end(name, 256, 44 + g, 25*4096, na=256)


def final(a, name):
    a.begin(name)
    a.e('s_cmp_ge_u32 s2, 256'); a.e('s_cbranch_scc1 %s_done' % name)
    a.e('s_lshr_b32 s41, s2, 2'); a.e('s_and_b32 s47, s2, 3')
    a.srd(8, D_WS, XN, 2048*896); a.srd(12, D_WS, MBMEM, MBP - MBMEM); a.srd(24, A_MEM0)
    a.srd(16, D_WS, U, 2048*14336); a.srd(20, D_WS, VOT, 7168*4096); a.srd(28, D_WS, YB, 64*16*448*16)
    a.e('v_and_b32 v1, 63, v0'); a.e('v_lshrrev_b32 v2, 6, v0'); a.e('v_and_b32 v3, 15, v0'); a.e('v_bfe_u32 v4, v0, 4, 2')
    a.e('v_lshlrev_b32 v5, 4, v0')
    for i in range(4): a.e('v_mov_b32 v%d, 0' % (8+i))
    for i in range(3): a.e('ds_write_b128 v5, v[8:11] offset:%d' % (32*HS + i*4096))
    a.e('s_waitcnt lgkmcnt(0)'); a.e('s_barrier')
    a.e('s_mul_i32 s46, s41, %d' % (32*896))
    for i in range(7):
        a.e('v_add_u32 v6, %d, v0' % (256*i)); a.e('s_mov_b32 s44, 0x%x' % ((2**32 + 55)//56)); a.e('v_mul_hi_u32 v7, v6, s44')
        a.e('v_mul_u32_u24 v8, 56, v7'); a.e('v_sub_u32 v8, v6, v8'); a.e('v_mul_u32_u24 v7, %d, v7' % HS); a.e('v_lshl_add_u32 v9, v8, 4, v7')
        bop(a, 'buffer_load_dwordx4', 'v[12:15]', 5, 8, 46, i*4096); a.e('s_waitcnt vmcnt(0)'); a.e('ds_write_b128 v9, v[12:15]')
    a.e('v_lshlrev_b32 v50, 3, v0'); a.e('v_lshlrev_b32 v51, 2, v0'); a.e('s_lshl_b32 s42, s41, 14')
    for i in range(7):
        a.e('v_add_u32 v6, %d, v0' % (256*i)); a.e('s_mov_b32 s44, 0x%x' % ((2**32 + 223)//224)); a.e('v_mul_hi_u32 v7, v6, s44')
        a.e('v_mul_u32_u24 v8, 224, v7'); a.e('v_sub_u32 v8, v6, v8'); a.e('v_mul_u32_u24 v7, %d, v7' % HS); a.e('v_lshl_add_u32 v9, v8, 2, v7')
        L = a.uniq('fm')
        a.e('s_cmp_lg_u32 s41, 0'); a.e('s_cbranch_scc1 %s_a' % L)
        bop(a, 'buffer_load_dword', 'v12', 51, 24, None, i*1024); a.e('s_branch %s_b' % L)
        a.lab(L + '_a'); bop(a, 'buffer_load_dword', 'v12', 50, 12, 42, i*2048); a.lab(L + '_b')
        a.e('s_waitcnt vmcnt(0)'); a.e('ds_write_b32 v9, v12 offset:%d' % (32*HS))
    a.e('s_waitcnt lgkmcnt(0)'); a.e('s_barrier')
    a.e('v_mul_u32_u24 v40, %d, v3' % HS); a.e('v_lshl_add_u32 v40, v4, 4, v40')
    a.e('s_lshl_b32 s44, s41, 5'); a.e('v_add_u32 v41, s44, v3'); a.e('s_mov_b32 s45, 14336'); a.e('v_mul_lo_u32 v41, v41, s45'); a.e('v_lshl_add_u32 v41, v4, 4, v41')
    a.e('v_mul_u32_u24 v6, 3584, v2'); a.e('v_add_u32 v41, v41, v6')
    a.e('s_mul_i32 s44, s47, 112'); a.e('v_mul_u32_u24 v42, 1792, v2'); a.e('v_add_u32 v42, v42, v3'); a.e('v_add_u32 v42, s44, v42'); a.e('v_mov_b32 v43, v42')
    a.e('v_lshlrev_b32 v42, 12, v42'); a.e('v_lshl_add_u32 v42, v4, 3, v42'); a.e('s_lshl_b32 s44, s41, 6'); a.e('v_add_u32 v42, s44, v42')
    a.e('v_lshlrev_b32 v43, 4, v43'); a.e('v_lshl_add_u32 v43, v4, 3, v43'); a.e('s_mul_i32 s44, s41, 114688'); a.e('v_add_u32 v43, s44, v43')
    a.e('v_cmp_lt_u32 vcc, 1, v4'); a.e('v_mov_b32 v6, 0x7f000000'); a.e('s_nop 1'); a.e('v_cndmask_b32 v44, 0, v6, vcc'); a.e('v_add_u32 v43, v43, v44')
    OA = 128
    for r in range(56): a.e('v_mov_b32 v%d, 0' % (OA + r))
    a.e('v_mov_b32 v118, 0xff800000')
    for hh in range(4):
        for r in range(24): a.e('v_mov_b32 v%d, 0' % (8 + r))
        for half in range(2):
            for k in range(7):
                for qt in range(2):
                    a.e('s_mov_b32 s45, %d' % (qt*16*14336 + hh*896))
                    ur = 184 + (k*2+qt)*4
                    a.e('buffer_load_dwordx4 v[%d:%d], v41, s[16:19], s45 offen offset:%d' % (ur, ur+3, (half*7+k)*64))
            for k in range(7):
                for kt in range(3): a.e('ds_read_b128 v[%d:%d], v40 offset:%d' % (68+4*kt, 71+4*kt, kt*16*HS + (half*7+k)*64))
                a.e('s_waitcnt vmcnt(%d) lgkmcnt(0)' % (12 - 2*k))
                for kt in range(3):
                    for qt in range(2):
                        c = 8 + (kt*2+qt)*4; ur = 184 + (k*2+qt)*4
                        a.e('v_mfma_f32_16x16x32_bf16 v[%d:%d], v[%d:%d], v[%d:%d], v[%d:%d]' % (c, c+3, 68+4*kt, 71+4*kt, ur, ur+3, c, c+3))
        for jt in range(7):
            rb = 184 + 8*jt
            a.e('s_mov_b32 s45, %d' % ((hh*448 + jt*16)*4096))
            a.e('buffer_load_dwordx2 v[%d:%d], v42, s[20:23], s45 offen' % (rb, rb+1)); a.e('buffer_load_dwordx2 v[%d:%d], v42, s[20:23], s45 offen offset:32' % (rb+2, rb+3))
            a.e('s_mov_b32 s45, %d' % ((hh*448 + jt*16)*16))
            a.e('buffer_load_dwordx2 v[%d:%d], v43, s[28:31], s45 offen' % (rb+4, rb+5))
            a.e('v_mov_b32 v%d, 0' % (rb+6)); a.e('v_mov_b32 v%d, 0' % (rb+7))
        a.e('s_nop 7')
        for qt in range(2):
            for kt in range(3):
                for r in range(4):
                    c = 8 + (kt*2+qt)*4 + r
                    if kt < 2:
                        a.e('v_lshl_add_u32 v6, v4, 2, %d' % (16*kt + r)); a.e('v_add_u32 v7, %d, v3' % (16*qt)); a.e('v_cmp_le_u32 vcc, v6, v7')
                    else:
                        a.e('v_cmp_gt_u32 vcc, 2, v4')
                    a.e('s_nop 1'); a.e('v_cndmask_b32 v%d, v118, v%d, vcc' % (c, c))
            regs = [8 + (kt*2+qt)*4 + r for kt in range(3) for r in range(4)]
            a.e('v_max_f32 v32, v%d, v%d' % (regs[0], regs[1]))
            for x in regs[2:]: a.e('v_max_f32 v32, v32, v%d' % x)
            def red(op):
                for m in (16, 32):
                    a.e('v_xor_b32 v33, %d, v1' % m); a.e('v_lshlrev_b32 v33, 2, v33'); a.e('ds_bpermute_b32 v34, v33, v32'); a.e('s_waitcnt lgkmcnt(0)'); a.e('%s v32, v32, v34' % op)
            red('v_max_f32')
            for x in regs:
                a.e('v_sub_f32 v%d, v%d, v32' % (x, x)); a.e('v_mul_f32 v%d, 0x3fb8aa3b, v%d' % (x, x)); a.e('v_exp_f32 v%d, v%d' % (x, x))
            a.e('s_nop 0'); a.e('v_add_f32 v32, v%d, v%d' % (regs[0], regs[1]))
            for x in regs[2:]: a.e('v_add_f32 v32, v32, v%d' % x)
            red('v_add_f32')
            a.e('v_rcp_f32 v32, v32'); a.e('s_nop 0')
            for x in regs: a.e('v_mul_f32 v%d, v%d, v32' % (x, x))
            pb = 80 + 8*qt
            for kt in range(3):
                c = 8 + (kt*2+qt)*4
                a.e('v_cvt_pk_bf16_f32 v%d, v%d, v%d' % (pb+2*kt, c, c+1)); a.e('v_cvt_pk_bf16_f32 v%d, v%d, v%d' % (pb+2*kt+1, c+2, c+3))
            a.e('v_mov_b32 v%d, 0' % (pb+6)); a.e('v_mov_b32 v%d, 0' % (pb+7))
        a.e('s_waitcnt vmcnt(0)')
        for jt in range(7):
            rb = 184 + 8*jt
            for qt in range(2):
                c = OA + (jt*2+qt)*4; pb = 80 + 8*qt
                a.e('v_mfma_f32_16x16x32_bf16 v[%d:%d], v[%d:%d], v[%d:%d], v[%d:%d]' % (c, c+3, rb, rb+3, pb, pb+3, c, c+3))
                a.e('v_mfma_f32_16x16x32_bf16 v[%d:%d], v[%d:%d], v[%d:%d], v[%d:%d]' % (c, c+3, rb+4, rb+7, pb+4, pb+7, c, c+3))
    a.e('s_nop 7'); a.e('s_nop 3'); a.e('s_barrier')
    QS = 464
    a.e('v_mul_u32_u24 v5, %d, v2' % (32*QS)); a.e('v_mul_u32_u24 v6, %d, v3' % QS); a.e('v_add_u32 v5, v5, v6'); a.e('v_lshl_add_u32 v5, v4, 4, v5')
    for jt in range(7):
        for qt in range(2):
            c = OA + (jt*2+qt)*4
            a.e('ds_write_b128 v5, v[%d:%d] offset:%d' % (c, c+3, qt*16*QS + jt*64))
    a.e('s_waitcnt lgkmcnt(0)'); a.e('s_barrier')
    a.srd(8, A_X); a.srd(12, D_WS, BO, 2048*896); a.srd(16, D_OUT)
    for it in range(4):
        a.e('v_add_u32 v6, %d, v0' % (256*it)); a.e('s_mov_b32 s44, 0x%x' % ((2**32 + 27)//28)); a.e('v_mul_hi_u32 v7, v6, s44')
        a.e('v_mul_u32_u24 v8, 28, v7'); a.e('v_sub_u32 v8, v6, v8')
        a.e('v_cmp_gt_u32 vcc, 896, v6'); a.e('s_mov_b64 s[36:37], exec'); a.e('s_and_b64 exec, exec, vcc')
        a.e('v_mul_u32_u24 v9, %d, v7' % QS); a.e('v_lshl_add_u32 v9, v8, 4, v9')
        for w in range(4): a.e('ds_read_b128 v[%d:%d], v9 offset:%d' % (12+4*w, 15+4*w, w*32*QS))
        a.e('s_lshl_b32 s44, s41, 5'); a.e('v_add_u32 v10, s44, v7'); a.e('v_mul_u32_u24 v10, 896, v10'); a.e('v_lshl_add_u32 v10, v8, 3, v10'); a.e('s_mul_i32 s44, s47, 224'); a.e('v_add_u32 v10, s44, v10')
        a.e('buffer_load_dwordx2 v[30:31], v10, s[8:11], 0 offen'); a.e('buffer_load_dwordx2 v[32:33], v10, s[12:15], 0 offen')
        a.e('s_waitcnt vmcnt(0) lgkmcnt(0)')
        for r in range(4):
            a.e('v_add_f32 v%d, v%d, v%d' % (12+r, 12+r, 16+r)); a.e('v_add_f32 v%d, v%d, v%d' % (20+r, 20+r, 24+r)); a.e('v_add_f32 v%d, v%d, v%d' % (12+r, 12+r, 20+r))
        def unpack(dst, src):
            for r in range(4):
                if r & 1: a.e('v_and_b32 v%d, 0xffff0000, v%d' % (dst+r, src+(r>>1)))
                else: a.e('v_lshlrev_b32 v%d, 16, v%d' % (dst+r, src+(r>>1)))
        def rnd():
            a.e('v_cvt_pk_bf16_f32 v34, v12, v13'); a.e('v_cvt_pk_bf16_f32 v35, v14, v15')
        rnd(); unpack(12, 34); unpack(16, 30)
        for r in range(4): a.e('v_add_f32 v%d, v%d, v%d' % (12+r, 12+r, 16+r))
        rnd(); unpack(12, 34); unpack(16, 32)
        for r in range(4): a.e('v_add_f32 v%d, v%d, v%d' % (12+r, 12+r, 16+r))
        rnd()
        a.e('buffer_store_dwordx2 v[34:35], v10, s[16:19], 0 offen')
        a.e('s_mov_b64 exec, s[36:37]')
    a.lab(name + '_done')
    a.end(name, 240, 256, 4*32*464)
```

```python
KNAME = "parallel_sum__memory_aug_recurrent_mem_tr__dense_activation_gelu__prompt_kernel"
A_X, A_MEM0, A_WQ, A_WK, A_WV, A_WO, A_SEG, B_X, B_W1, B_B1, B_W2, B_B2, D_OUT, D_DBG, D_WS = range(15)
SIZES = {A_X: 2048*448*2, A_MEM0: 8*448*2, A_WQ: 448*4096*2, A_WK: 448*4096*2, A_WV: 448*4096*2, A_WO: 448*4096*2,
         B_W1: 448*1792*2, B_B1: 1792*2, B_W2: 448*1792*2, B_B2: 448*2, D_OUT: 2048*448*2, D_DBG: 256, D_WS: 268435456}
XN = 0x0; AT = 0x200000; WVT = 0x900000; WOT = 0x1000000; W1T = 0x1400000; W2T = 0x1600000
H1 = 0x1800000; BO = 0x2000000; U = 0x2200000; VOT = 0x4000000
MBMEM = 0x6000000; MBMEM_SLOT = 0x4000; MBP = 0x6200000; MBP_SLOT = 0x8000; YB = 0x6800000
MB_END = 0x6400000

class Asm:
    def __init__(self):
        self.l = []; self.k = []; self.launch = []; self.n = 0
    def e(self, s):
        for x in s.strip('\n').split('\n'):
            self.l.append('    ' + x.strip())
    def lab(self, s): self.l.append(s + ':')
    def uniq(self, p):
        self.n += 1; return '%s_%d' % (p, self.n)
    def begin(self, name):
        self.l += ['.text', '.globl ' + name, '.p2align 8', '.type %s,@function' % name, name + ':']
    def end(self, name, nv, grid, lds, na=0, block=256, ns=102):
        self.e('s_endpgm')
        acc = (nv + 3) // 4 * 4
        self.k.append(""".section .rodata,"a"
.p2align 6
.amdhsa_kernel %s
  .amdhsa_next_free_vgpr %d
  .amdhsa_next_free_sgpr %d
  .amdhsa_accum_offset %d
  .amdhsa_group_segment_fixed_size 0
  .amdhsa_kernarg_size 120
  .amdhsa_user_sgpr_count 2
  .amdhsa_user_sgpr_kernarg_segment_ptr 1
  .amdhsa_system_sgpr_workgroup_id_x 1
.end_amdhsa_kernel""" % (name, acc + na if na else nv, ns, acc))
        self.launch.append('; @launch kernel=%s grid=(%d,1,1) block=(%d,1,1) lds=%d' % (name, grid, block, lds))
    def srd(self, s, slot, off=0, size=None, tmp=None):
        if size is None: size = SIZES[slot] - off
        self.e('s_load_dwordx2 s[%d:%d], s[0:1], %d' % (s, s+1, slot*8))
        self.e('s_waitcnt lgkmcnt(0)')
        if off:
            self.e('s_add_u32 s%d, s%d, 0x%x' % (s, s, off))
            self.e('s_addc_u32 s%d, s%d, 0' % (s+1, s+1))
        self.e('s_and_b32 s%d, s%d, 0xffff' % (s+1, s+1))
        self.e('s_mov_b32 s%d, 0x%x' % (s+2, size))
        self.e('s_mov_b32 s%d, 0x00020000' % (s+3))
    def text(self, header):
        return header + '\n'.join(self.launch) + '\n.amdgcn_target "amdgcn-amd-amdhsa--gfx950"\n' + '\n'.join(self.l) + '\n' + '\n'.join(self.k) + '\n'

def divmod_s(a, sq, sr, ssrc, d, stmp):
    magic = (2**32 + d - 1) // d
    a.e('s_mul_hi_u32 s%d, s%d, 0x%x' % (sq, ssrc, magic))
    a.e('s_mul_i32 s%d, s%d, %d' % (stmp, sq, d))
    a.e('s_sub_u32 s%d, s%d, s%d' % (sr, ssrc, stmp))

def gemm(a, name, A, B, O, M, N, K, batch, TM, TN, epi=None, bias=None, embed=None, signal=False):
    tm, tn = M // TM, N // TN
    grid = tm * tn * batch
    if embed is None:
        a.begin(name)
    else:
        a.lab(name); a.e('s_sub_u32 s2, s2, %d' % embed[0])
    a.e('s_cmp_ge_u32 s2, %d' % grid); a.e('s_cbranch_scc1 %s' % (name + '_done' if embed is None else embed[1]))
    divmod_s(a, 20, 23, 2, tm * tn, 24)
    if signal: divmod_s(a, 21, 22, 23, tn, 24)
    else: divmod_s(a, 22, 21, 23, tm, 24)
    a.srd(8, A[0], A[1]); a.srd(12, B[0], B[1]); a.srd(16, O[0], O[1])
    if bias is not None: a.srd(28, bias[0], 0)
    LS = 144
    nA, nB = TM * 8 // 256, TN * 8 // 256
    bufsz = (TM + TN) * LS
    a.e('v_lshrrev_b32 v4, 3, v0')
    a.e('v_and_b32 v5, 7, v0')
    a.e('v_lshlrev_b32 v5, 4, v5')
    a.e('s_mul_i32 s24, s21, %d' % (TM * A[2])); a.e('s_mul_i32 s25, s20, %d' % A[3]); a.e('s_add_u32 s24, s24, s25')
    a.e('s_mov_b32 s26, %d' % A[2]); a.e('v_mul_lo_u32 v1, v4, s26'); a.e('v_add_u32 v1, v1, v5'); a.e('v_add_u32 v1, s24, v1')
    a.e('s_mul_i32 s24, s22, %d' % (TN * B[2])); a.e('s_mul_i32 s25, s20, %d' % B[3]); a.e('s_add_u32 s24, s24, s25')
    a.e('s_mov_b32 s26, %d' % B[2]); a.e('v_mul_lo_u32 v2, v4, s26'); a.e('v_add_u32 v2, v2, v5'); a.e('v_add_u32 v2, s24, v2')
    a.e('v_mul_u32_u24 v3, %d, v4' % LS); a.e('v_add_u32 v3, v3, v5')
    WM, WN = TM // 2, TN // 2
    a.e('v_lshrrev_b32 v6, 6, v0'); a.e('v_and_b32 v7, 1, v6'); a.e('v_lshrrev_b32 v6, 1, v6')
    a.e('v_and_b32 v8, 31, v0'); a.e('v_bfe_u32 v9, v0, 5, 1'); a.e('v_lshlrev_b32 v10, 4, v9')
    a.e('v_mul_u32_u24 v11, %d, v7' % WM); a.e('v_add_u32 v11, v11, v8'); a.e('v_mul_u32_u24 v11, %d, v11' % LS); a.e('v_add_u32 v11, v11, v10')
    a.e('v_mul_u32_u24 v12, %d, v6' % WN); a.e('v_add_u32 v12, v12, v8'); a.e('v_mul_u32_u24 v12, %d, v12' % LS); a.e('v_add_u32 v12, v12, v10')
    a.e('v_add_u32 v12, %d, v12' % (TM * LS))
    ti, tj = WM // 32, WN // 32
    a.e('v_add_u32 v15, %d, v3' % bufsz); a.e('v_add_u32 v16, %d, v11' % bufsz); a.e('v_add_u32 v17, %d, v12' % bufsz)
    ACC = 20; nacc = ti * tj * 16
    FA = ACC + nacc; FB = FA + 4 * ti; ST = FB + 4 * tj
    nv = ST + 4 * (nA + nB)
    for r in range(nacc): a.e('v_mov_b32 v%d, 0' % (ACC + r))
    def gload(kc):
        a.e('s_mov_b32 s27, %d' % (kc * 128))
        for i in range(nA):
            a.e('v_add_u32 v13, %d, v1' % (i * 32 * A[2])) if i else None
            a.e('buffer_load_dwordx4 v[%d:%d], v%d, s[8:11], s27 offen' % (ST + 4*i, ST + 4*i + 3, 13 if i else 1))
        for i in range(nB):
            a.e('v_add_u32 v14, %d, v2' % (i * 32 * B[2])) if i else None
            a.e('buffer_load_dwordx4 v[%d:%d], v%d, s[12:15], s27 offen' % (ST + 4*(nA+i), ST + 4*(nA+i) + 3, 14 if i else 2))
    def lstore(buf):
        for i in range(nA):
            a.e('ds_write_b128 v%d, v[%d:%d] offset:%d' % (15 if buf else 3, ST + 4*i, ST + 4*i + 3, i*32*LS))
        for i in range(nB):
            a.e('ds_write_b128 v%d, v[%d:%d] offset:%d' % (15 if buf else 3, ST + 4*(nA+i), ST + 4*(nA+i) + 3, TM*LS + i*32*LS))
    nK = K // 64
    gload(0); a.e('s_waitcnt vmcnt(0)'); lstore(0); a.e('s_waitcnt lgkmcnt(0)'); a.e('s_barrier')
    for kc in range(nK):
        buf = kc & 1
        if kc + 1 < nK: gload(kc + 1)
        for ks in range(4):
            for i in range(ti): a.e('ds_read_b128 v[%d:%d], v%d offset:%d' % (FA+4*i, FA+4*i+3, 16 if buf else 11, i*32*LS + ks*32))
            for j in range(tj): a.e('ds_read_b128 v[%d:%d], v%d offset:%d' % (FB+4*j, FB+4*j+3, 17 if buf else 12, j*32*LS + ks*32))
            a.e('s_waitcnt lgkmcnt(0)')
            for i in range(ti):
                for j in range(tj):
                    c = ACC + (i*tj + j) * 16
                    a.e('v_mfma_f32_32x32x16_bf16 v[%d:%d], v[%d:%d], v[%d:%d], v[%d:%d]' % (c, c+15, FA+4*i, FA+4*i+3, FB+4*j, FB+4*j+3, c, c+15))
        if kc + 1 < nK:
            a.e('s_waitcnt vmcnt(0)'); lstore(buf ^ 1); a.e('s_waitcnt lgkmcnt(0)'); a.e('s_barrier')
    a.e('s_nop 15'); a.e('s_nop 7')
    a.e('s_mul_i32 s24, s22, %d' % TN); a.e('v_mul_u32_u24 v1, %d, v6' % WN); a.e('v_add_u32 v1, v1, v8'); a.e('v_add_u32 v1, s24, v1')
    a.e('s_mov_b32 s26, %d' % O[2]); a.e('v_mul_lo_u32 v1, v1, s26')
    a.e('s_mul_i32 s24, s21, %d' % TM); a.e('v_mul_u32_u24 v2, %d, v7' % WM); a.e('v_lshl_add_u32 v2, v9, 2, v2'); a.e('v_add_u32 v2, s24, v2')
    a.e('v_lshlrev_b32 v2, 1, v2')
    a.e('s_mul_i32 s25, s20, %d' % O[3]); a.e('v_add_u32 v1, v1, v2'); a.e('v_add_u32 v1, s25, v1')
    T = FA
    for i in range(ti):
        for j in range(tj):
            c = ACC + (i*tj + j) * 16
            for g in range(4):
                r = c + 4*g
                moff = (i*32 + 8*g) * 2
                if bias is not None:
                    a.e('buffer_load_dwordx2 v[%d:%d], v2, s[28:31], 0 offen offset:%d' % (T, T+1, moff))
                if epi == 'scale':
                    for q in range(4): a.e('v_mul_f32 v%d, 0x3d800000, v%d' % (r+q, r+q))
                if bias is not None:
                    a.e('v_cvt_pk_bf16_f32 v%d, v%d, v%d' % (T+2, r, r+1)); a.e('v_cvt_pk_bf16_f32 v%d, v%d, v%d' % (T+3, r+2, r+3))
                    a.e('s_waitcnt vmcnt(0)')
                    for q in range(4):
                        src = T + 2 + (q >> 1); bs = T + (q >> 1)
                        if q & 1:
                            a.e('v_and_b32 v%d, 0xffff0000, v%d' % (r+q, src)); a.e('v_and_b32 v%d, 0xffff0000, v%d' % (T+4, bs))
                        else:
                            a.e('v_lshlrev_b32 v%d, 16, v%d' % (r+q, src)); a.e('v_lshlrev_b32 v%d, 16, v%d' % (T+4, bs))
                        a.e('v_add_f32 v%d, v%d, v%d' % (r+q, r+q, T+4))
                    if epi == 'gelu':
                        a.e('v_cvt_pk_bf16_f32 v%d, v%d, v%d' % (T+2, r, r+1)); a.e('v_cvt_pk_bf16_f32 v%d, v%d, v%d' % (T+3, r+2, r+3))
                        for q in range(4):
                            src = T + 2 + (q >> 1)
                            if q & 1: a.e('v_and_b32 v%d, 0xffff0000, v%d' % (r+q, src))
                            else: a.e('v_lshlrev_b32 v%d, 16, v%d' % (r+q, src))
                            a.e('v_mul_f32 v%d, v%d, v%d' % (T+4, r+q, r+q))
                            a.e('v_mul_f32 v%d, 0x3d372713, v%d' % (T+4, T+4))
                            a.e('v_fma_f32 v%d, v%d, v%d, v%d' % (T+4, T+4, r+q, r+q))
                            a.e('v_mul_f32 v%d, 0xc0135761, v%d' % (T+4, T+4))
                            a.e('v_exp_f32 v%d, v%d' % (T+4, T+4)); a.e('s_nop 0')
                            a.e('v_add_f32 v%d, 1.0, v%d' % (T+4, T+4))
                            a.e('v_rcp_f32 v%d, v%d' % (T+4, T+4)); a.e('s_nop 0')
                            a.e('v_mul_f32 v%d, v%d, v%d' % (r+q, r+q, T+4))
                a.e('v_cvt_pk_bf16_f32 v%d, v%d, v%d' % (T+2, r, r+1)); a.e('v_cvt_pk_bf16_f32 v%d, v%d, v%d' % (T+3, r+2, r+3))
                if j:
                    a.e('s_mov_b32 s26, %d' % (j * 32 * O[2]))
                    a.e('buffer_store_dwordx2 v[%d:%d], v1, s[16:19], s26 offen offset:%d%s' % (T+2, T+3, moff, ' sc1' if signal else ''))
                else:
                    a.e('buffer_store_dwordx2 v[%d:%d], v1, s[16:19], 0 offen offset:%d%s' % (T+2, T+3, moff, ' sc1' if signal else ''))
                a.e('s_waitcnt vmcnt(0)')
    if signal:
        a.e('s_barrier'); a.srd(32, D_DBG)
        a.e('v_cmp_eq_u32 vcc, 0, v0'); a.e('s_and_b64 exec, exec, vcc')
        a.e('s_lshl_b32 s24, s21, 2'); a.e('v_mov_b32 v8, 1'); a.e('v_mov_b32 v9, s24')
        a.e('buffer_atomic_add v8, v9, s[32:35], 0 offen sc1')
    a.lab(name + '_done')
    if embed is None: a.end(name, nv, grid, 2 * bufsz)
    else: a.e('s_endpgm')
    return grid
```

```python
from lib import *
from prep import prep
import sys
hdr = open('parallel_sum__memory_aug_recurrent_mem_tr__dense_activation_gelu__prompt.s.ref').read().split('; @launch')[0]
a = Asm()
prep(a, 'prep_kernel')
a.begin('g1_kernel')
g = gemm(a, 'y_f1', (D_WS, W1T, 896, 0), (D_WS, XN, 896, 0), (D_WS, H1, 3584, 0), 1792, 2048, 448, 1, 128, 128, epi='gelu', bias=(B_B1,), embed=(0, 'y_at'))
g2 = gemm(a, 'y_at', (A_WQ, 0, 8192, 512), (A_WK, 0, 8192, 512), (D_WS, AT, 896, 448*896), 448, 448, 256, 16, 64, 64, epi='scale', embed=(g, 'y_wv'))
g3 = gemm(a, 'y_wv', (A_WV, 0, 8192, 512), (D_WS, WOT, 512, 448*512), (D_WS, WVT, 896, 448*896), 448, 448, 256, 16, 64, 64, embed=(g2, 'y_end'))
a.lab('y_end')
a.end('g1_kernel', 132, g+g2+g3, 73728)
def extra():
    g0 = gemm(a, 'x_gvo', (D_WS, XN, 896, 0), (D_WS, WVT, 896, 0), (D_WS, VOT, 4096, 0), 2048, 7168, 448, 1, 128, 128, embed=(44, 'x_gf2'), signal=True)
    g = gemm(a, 'x_gf2', (D_WS, W2T, 3584, 0), (D_WS, H1, 3584, 0), (D_WS, BO, 896, 0), 448, 2048, 1792, 1, 64, 64, bias=(B_B2,), embed=(g0, 'x_gu'))
    g += gemm(a, 'x_gu', (D_WS, AT, 896, 0), (D_WS, XN, 896, 0), (D_WS, U, 7168*2, 0), 7168, 2048, 448, 1, 128, 128, embed=(g, 'chain_kernel_done2'))
    return g + g0
try:
    from chain import chain, final
    chain(a, 'chain_kernel', extra); final(a, KNAME)
except ImportError:
    pass
open('parallel_sum__memory_aug_recurrent_mem_tr__dense_activation_gelu__prompt.s', 'w').write(a.text(hdr))
```
